```python
import torch

def _softmax(x, axis=-1):
    return torch.softmax(x, dim=axis)
def _gelu(x):
    return torch.nn.functional.gelu(x, approximate="tanh")
def _silu(x):
    return torch.nn.functional.silu(x)
def _sigmoid(x):
    return torch.sigmoid(x)
def _layernorm(x, axis=-1, eps=1e-5):
    m = x.mean(dim=axis, keepdim=True)
    v = x.var(dim=axis, keepdim=True, unbiased=False)
    return (x - m) / torch.sqrt(v + eps)
def _scatter_add(tgt, idx, src, axis=0):
    return tgt.clone().index_add_(axis, idx, src)
def _segment_sum(src, seg, n):
    out = torch.zeros((n,) + src.shape[1:], dtype=src.dtype)
    return out.index_add_(0, seg, src)
def _pad(x, pw):
    flat = tuple(v for pair in reversed(pw) for v in pair)
    return torch.nn.functional.pad(x, flat)

kernel_name = 'recurrent_scan__sliding_block_cached__geglu_ffn__decode'

def setup_inputs():

    _w = (lambda a: (lambda t: t.to(torch.bfloat16) if t.is_floating_point() else t)(torch.as_tensor(a)))
    def _A_setup():
        B, Sq, D = 1, 1, 448
        Hq, Hkv, Sk, Dh = 16, 8, 32768, 256
        assert Hq % Hkv == 0, (Hq, Hkv)
        return {
            "x": _w((lambda *s: torch.randn(*s, dtype=torch.bfloat16) * 0.05)(B, Sq, D)),
            "k_cache": _w((lambda *s: torch.randn(*s, dtype=torch.bfloat16) * 1.6)(B, Hkv, Sk, Dh)),
            "v_cache": _w((lambda *s: torch.randn(*s, dtype=torch.bfloat16) * 0.2)(B, Hkv, Sk, Dh)),
            "wq": _w((lambda *s: torch.randn(*s, dtype=torch.bfloat16) * 1.6)(D, Hq * Dh) * (D ** -0.5)),
            "wo": _w((lambda *s: torch.randn(*s, dtype=torch.bfloat16) * 0.2)(Hq * Dh, D) * ((Hq * Dh) ** -0.5)),
        }
    _A_in = _A_setup()

    def _B_setup():
        B, S, D, F = 1, 1, 448, 1792
        return {
            "x": _w((lambda *s: torch.randn(*s, dtype=torch.bfloat16) * 0.05)(B, S, D)),
            "w_gate": _w((lambda *s: torch.randn(*s, dtype=torch.bfloat16) * 0.1)(D, F)),
            "w_up": _w((lambda *s: torch.randn(*s, dtype=torch.bfloat16) * 0.1)(D, F)),
            "w_down": _w((lambda *s: torch.randn(*s, dtype=torch.bfloat16) * 0.1)(F, D)),
        }
    _B_in = _B_setup()

    return {
        "A_x": _A_in["x"],
        "A_k_cache": _A_in["k_cache"],
        "A_v_cache": _A_in["v_cache"],
        "A_wq": _A_in["wq"],
        "A_wo": _A_in["wo"],
        "B_x": _B_in["x"],
        "B_w_gate": _B_in["w_gate"],
        "B_w_up": _B_in["w_up"],
        "B_w_down": _B_in["w_down"],
    }

def reference(A_x, A_k_cache, A_v_cache, A_wq, A_wo, B_x, B_w_gate, B_w_up, B_w_down):
    def _A_ref(x, k_cache, v_cache, wq, wo):
        B, Sq, D = x.shape
        Hq, Dh = 16, 256
        Hkv, Sk = k_cache.shape[1], k_cache.shape[2]
        W = min(4096, max(256, Sk // 4))
        rep = Hq // Hkv
        q = (lambda x, *d: x.permute(*d))((x @ wq).reshape(B, Sq, Hq, Dh), 0, 2, 1, 3)
        k = (lambda x, n, axis: torch.repeat_interleave(x, n, dim=axis))(k_cache[:, :, Sk - W:, :], rep, axis=1)
        v = (lambda x, n, axis: torch.repeat_interleave(x, n, dim=axis))(v_cache[:, :, Sk - W:, :], rep, axis=1)
        scores = torch.einsum("bhqd,bhkd->bhqk", q, k) * (Dh ** -0.5)
        p = _softmax(scores, axis=-1)
        o = torch.einsum("bhqk,bhkd->bhqd", p, v)
        return (lambda x, *d: x.permute(*d))(o, 0, 2, 1, 3).reshape(B, Sq, Hq * Dh) @ wo

    def _B_ref(x, w_gate, w_up, w_down):
        return (_gelu(x @ w_gate) * (x @ w_up)) @ w_down

    x = A_x
    xn = _layernorm(x, axis=-1)
    s = _A_ref(xn, A_k_cache, A_v_cache, A_wq, A_wo)
    g = _silu(_B_ref(xn, B_w_gate, B_w_up, B_w_down))
    return x + s * g
```

```python
import re
TRANS = ("v_exp_f32", "v_log_f32", "v_rcp_f32", "v_rsq_f32", "v_sqrt_f32", "v_sin_f32", "v_cos_f32")
def regs_of(tok):
    tok = tok.strip().lstrip("-")
    m = re.fullmatch(r"(?:abs\()?([vs])(\d+)\)?", tok)
    if m: return {(m.group(1), int(m.group(2)))}
    m = re.fullmatch(r"([vs])\[(\d+):(\d+)\]", tok)
    if m: return {(m.group(1), i) for i in range(int(m.group(2)), int(m.group(3)) + 1)}
    if tok == "vcc": return {("s", 106), ("s", 107)}
    if tok == "exec": return {("s", 126), ("s", 127)}
    return set()
class Ins:
    def __init__(self, text):
        self.text = text
        t = text.split(";")[0].strip()
        self.label = t.endswith(":")
        self.directive = t.startswith(".") or t == ""
        self.op = t.split()[0] if t else ""
        rest = t[len(self.op):].strip()
        ops = []; d = 0; cur = ""
        for ch in rest:
            if ch in "[(": d += 1
            if ch in "])": d -= 1
            if ch == "," and d == 0: ops.append(cur); cur = ""
            else: cur += ch
        if cur.strip(): ops.append(cur)
        if ops:
            last = ops[-1].strip().split()
            self.mods = " ".join(last[1:]); ops[-1] = last[0] if last else ""
        else: self.mods = ""
        self.ops = [o.strip() for o in ops]
        op = self.op
        self.mfma = op.startswith("v_mfma")
        self.valu = op.startswith("v_") and not self.mfma
        self.trans = any(op.startswith(x) for x in TRANS)
        self.dpp = "_dpp" in op or "row_" in self.mods or "quad_perm" in self.mods
        self.perml = op.startswith("v_permlane")
        self.vmem = op.startswith(("buffer_", "global_"))
        self.ds = op.startswith("ds_")
        self.rdl = op.startswith(("v_readfirstlane", "v_readlane"))
        R = [regs_of(o) for o in self.ops]
        self.w = set(); self.r = set(); self.srcc = set(); self.stdata = set()
        if self.label or self.directive: return
        if self.mfma:
            self.w = R[0]; self.r = R[1] | R[2] | R[3]; self.srcc = R[3]; self.ab = R[1] | R[2]
        elif self.valu:
            if self.perml: self.w = R[0] | R[1]; self.r = R[0] | R[1]
            else:
                self.w = R[0]; self.r = set().union(*R[1:]) if len(R) > 1 else set()
                if op.startswith(("v_fmac", "v_dot2c", "v_writelane")) or self.dpp: self.r |= R[0]
                if op.startswith(("v_add_co", "v_sub_co", "v_addc_co")): self.w |= R[1]
                if op.startswith("v_cndmask") and len(R) == 3: self.r |= regs_of("vcc")
        elif self.vmem:
            if "store" in op:
                self.r = set().union(*R);
                if op.endswith(("x4", "x3")): self.stdata = R[0] if op.startswith("buffer") else R[1]
            elif "atomic" in op:
                self.r = set().union(*R); self.w = R[0] if "sc0" in self.mods else set()
            else:
                self.w = R[0]; self.r = set().union(*R[1:])
        elif self.ds:
            if op.startswith(("ds_read", "ds_bpermute", "ds_swizzle")): self.w = R[0]; self.r = set().union(*R[1:])
            else: self.r = set().union(*R)
        else:
            pass
    def states(self):
        if self.label or self.directive: return 0
        if self.op == "s_nop": return int(self.ops[0]) + 1
        return 1
def vonly(s): return {x for x in s if x[0] == "v"}
def sonly(s): return {x for x in s if x[0] == "s"}
def need(p, c):
    n = 0
    if p.valu:
        wv = vonly(p.w); ws = sonly(p.w)
        if c.dpp and wv & c.r: n = max(n, 2)
        if c.perml and wv & c.r: n = max(n, 2)
        if c.mfma and wv & c.r: n = max(n, 2)
        if c.rdl and wv & c.r: n = max(n, 1)
        if p.trans and c.valu and not c.trans and wv & c.r: n = max(n, 1)
        if p.trans and (c.ds or c.vmem) and wv & c.r: n = max(n, 1)
        if ws and c.valu and ws & c.r: n = max(n, 4 if c.op.startswith(("v_readlane", "v_writelane")) else 2)
        if ws and c.vmem and ws & c.r: n = max(n, 5)
    if p.mfma:
        if c.mfma:
            if p.w & c.ab: n = max(n, 8)
            if p.w & c.srcc and p.w != c.srcc: n = max(n, 6)
            if p.w & c.w and not (p.w == c.srcc): n = max(n, 6)
        elif (c.valu or c.vmem or c.ds) and p.w & (c.r | c.w): n = max(n, 8)
        if c.valu and p.srcc & c.w: n = max(n, 3)
    if p.stdata and (c.valu or c.mfma or c.vmem or c.ds) and p.stdata & c.w: n = max(n, 2)
    return n
class Emit:
    def __init__(self): self.L = []; self.nops = 0
    def __call__(self, text):
        for line in text.split("\n"):
            line = line.strip()
            if not line: continue
            c = Ins(line)
            if not (c.label or c.directive):
                dist = 0; req = 0
                for p in reversed(self.L):
                    if p.op in ("s_branch", "s_endpgm", "s_setpc_b64"): break
                    if dist >= 10: break
                    nd = need(p, c)
                    if nd > dist: req = max(req, nd - dist)
                    dist += p.states()
                if req:
                    self.L.append(Ins(f"s_nop {req-1}")); self.nops += 1
            self.L.append(c)
    def text(self): return "\n".join(("" if (i.label or i.directive) else "    ") + i.text for i in self.L) + "\n"
```

```python
import sys, math, struct
from emit import Emit
KN = "recurrent_scan__sliding_block_cached__geglu_ffn__decode"
def f2u(x): return struct.unpack("<I", struct.pack("<f", x))[0]

EPOCH = 0; ALIVE = 0x200; QA = 0x10000; STA = 0x20000; OA = 0x40000; OUTP = 0xC0000; COPYB = 0x100000
STAMP_OFF = 256 << 20
L_Q = 0; L_ST = 1024; L_FAC = 1280; L_PART = 2048
L_XN = 0; L_H = 1792; L_P1 = 2048; L_P2 = 10240
LDS_BYTES = 40960
NW = 12
DPPM = "row_mask:0xf bank_mask:0xf"
VALID = 0xFF00FF0000FF00FF

def gen(fname, diag=False, att_depth=2, att_pre=14, ffn_depth=0, wo_depth=0, limit=100000, dual=True):
    A = Emit()
    def stamp(k):
        if diag: A(f"s_memrealtime s[{64+2*k}:{65+2*k}]")
    def srd(d, p, n):
        A(f"s_mov_b32 s{d}, s{p}\ns_mov_b32 s{d+1}, s{p+1}\ns_mov_b32 s{d+2}, {n}\ns_mov_b32 s{d+3}, 0x20000")
    def exec_set(val):
        if val == -1: A("s_mov_b64 exec, -1")
        else: A(f"s_mov_b32 exec_lo, 0x{val & 0xffffffff:x}\ns_mov_b32 exec_hi, 0x{val >> 32:x}")
    def ws_setup():
        srd(44, 26, 0x20000000)
        A(f"s_load_dword s30, s[26:27], {EPOCH}")
    def tag_ready():
        A("s_waitcnt lgkmcnt(0)\ns_add_u32 s30, s30, 1")
    def masks():
        A("""v_and_b32 v8, 1, v1
        v_lshlrev_b32 v8, 4, v8
        v_mov_b32 v9, 0xffff
        v_lshlrev_b32 v9, v8, v9
        v_bfe_u32 v8, v1, 1, 2""")
        for d in range(4):
            A(f"v_cmp_eq_u32 vcc, {d}, v8\ns_nop 1\nv_cndmask_b32 v{4+d}, 0, v9, vcc")
    def poll(name, loads, sbase, smask, t, use_dual, execval=-1):
        A(f"s_mov_b32 s61, 0\ns_mov_b32 s60, s{sbase}\ns_add_u32 s62, s{sbase}, {COPYB}")
        A(f"{name}:")
        for d, vo, imm in loads:
            A(f"buffer_load_dwordx4 v[{d}:{d+3}], v{vo}, s[44:47], s60 offen {'offset:%d ' % imm if imm else ''}sc1")
        A("s_add_u32 s61, s61, 1")
        if use_dual:
            A(f"s_and_b32 s63, s61, 15\ns_cmp_eq_u32 s63, 15\ns_cselect_b32 s60, s62, s{sbase}")
        A(f"s_cmp_gt_u32 s61, {limit}\ns_cbranch_scc1 {name}_done")
        A("s_waitcnt vmcnt(0)")
        xs = []
        for k, (d, vo, imm) in enumerate(loads):
            A(f"v_bitop3_b32 v{t+2*k}, v{d}, v{d+1}, s30 bitop3:0x7e")
            A(f"v_bitop3_b32 v{t+2*k+1}, v{d+2}, v{d+3}, s30 bitop3:0x7e")
        if len(loads) == 2:
            A(f"v_or3_b32 v{t}, v{t}, v{t+2}, v{t+3}")
        A(f"v_bitop3_b32 v{t}, v{t}, v{t+1}, s{smask} bitop3:0xa8")
        A(f"v_cmp_ne_u32 vcc, 0, v{t}")
        A("s_and_b64 exec, exec, vcc")
        A(f"s_cbranch_execnz {name}")
        A(f"{name}_done:")
        exec_set(execval)
    def row_allreduce(op, regs):
        for sh in (8, 4, 2, 1):
            for r in regs:
                A(f"{op}_dpp v{r}, v{r}, v{r} row_ror:{sh} {DPPM}")
    def cross_allreduce(op, regs, tmps, which=(16, 32)):
        for wch in which:
            for r, t in zip(regs, tmps): A(f"v_mov_b32 v{t}, v{r}")
            for r, t in zip(regs, tmps): A(f"v_permlane{wch}_swap_b32 v{r}, v{t}")
            for r, t in zip(regs, tmps): A(f"{op} v{r}, v{r}, v{t}")
    def bf16r(dst, src):
        A(f"v_cvt_pk_bf16_f32 v{dst}, 0, v{src}")
    def finish():
        A("s_branch L_fin")

    A(f"""; @launch grid=(256,1,1) block=({NW*64},1,1) lds={LDS_BYTES}
.amdgcn_target "amdgcn-amd-amdhsa--gfx950"
.text
.globl {KN}_kernel
.p2align 8
.type {KN}_kernel,@function
{KN}_kernel:""")
    stamp(0)
    A("""s_cmp_ge_u32 s2, 256
    s_cbranch_scc1 L_end
    s_load_dwordx16 s[4:19], s[0:1], 0
    s_load_dwordx8 s[20:27], s[0:1], 64
    v_lshrrev_b32 v1, 6, v0
    v_and_b32 v0, 63, v0
    v_readfirstlane_b32 s3, v1
    v_and_b32 v1, 15, v0
    v_lshrrev_b32 v2, 4, v0
    s_and_b32 s28, s2, 7
    s_lshr_b32 s29, s2, 3
    s_movk_i32 s58, 0xfff
    s_mov_b32 s59, 0xffff""")
    if diag:
        for k in range(1, 8): A(f"s_mov_b64 s[{64+2*k}:{65+2*k}], 0")
    A("""s_cmp_lt_u32 s29, 4
    s_cbranch_scc1 L_qo
    s_cmp_ge_u32 s29, 28
    s_cbranch_scc1 L_ffn""")
    K0, V0 = 16, 48
    A(f"""s_sub_u32 s48, s29, 4
    s_cmp_eq_u32 s3, 11
    s_cbranch_scc1 L_att_helper
    s_mul_i32 s49, s48, 10
    s_add_u32 s49, s49, s3
    s_add_u32 s50, s48, 240
    s_cmp_eq_u32 s3, 10
    s_cselect_b32 s49, s50, s49
    s_cmp_ge_u32 s49, 256
    s_cbranch_scc1 L_att_idle
    s_lshl_b32 s50, s28, 24
    s_lshl_b32 s49, s49, 13
    s_add_u32 s49, s49, s50
    s_add_u32 s49, s49, {28672*512}
    s_and_b32 s51, s3, 7
    s_lshl_b32 s51, s51, 8
    s_or_b32 s49, s49, s51
    v_lshrrev_b32 v8, 2, v1
    v_lshlrev_b32 v10, 11, v8
    v_and_b32 v9, 3, v1
    v_lshlrev_b32 v9, 4, v9
    v_lshl_add_u32 v9, v2, 6, v9          ; g*64 + (m&3)*16
    v_add_u32 v10, v10, v9
    v_lshlrev_b32 v11, 11, v2
    v_lshl_add_u32 v11, v1, 4, v11
    s_waitcnt lgkmcnt(0)""")
    srd(32, 6, 134217728); srd(36, 8, 134217728)
    stamp(1)
    def att_load(j):
        sr, vo, d = (32, 10, K0 + 4 * j) if j < 8 else (36, 11, V0 + 4 * (j - 8))
        A(f"s_xor_b32 s52, s49, {(j & 7) * 256}")
        A(f"buffer_load_dwordx4 v[{d}:{d+3}], v{vo}, s[{sr}:{sr+3}], s52 offen nt")
    for j in range(att_depth + 1): att_load(j)
    ws_setup()
    A(f"""v_lshrrev_b32 v8, 3, v1
    v_lshl_add_u32 v12, v8, 9, v9
    s_and_b32 s53, s51, 256
    v_xor_b32 v12, s53, v12
    v_xor_b32 v14, 256, v12               ; t=1
    v_lshlrev_b32 v15, 7, v8
    s_lshl_b32 s54, s3, 3
    s_add_u32 s54, s54, {L_ST}
    v_add_u32 v15, s54, v15
    v_lshrrev_b32 v8, 1, v2
    v_lshlrev_b32 v13, 10, v8
    v_and_b32 v8, 1, v2
    v_lshl_add_u32 v13, v8, 8, v13
    v_lshl_add_u32 v13, v1, 4, v13
    s_lshl_b32 s54, s3, 11
    s_add_u32 s54, s54, {L_PART}
    s_lshl_b32 s53, s53, 1
    s_add_u32 s54, s54, s53
    v_add_u32 v13, s54, v13
    v_xor_b32 v3, 512, v13                ; t=1""")
    masks()
    for j in range(att_depth + 1, att_pre):
        A(f"s_waitcnt vmcnt({att_depth})"); att_load(j)
    stamp(2)
    A("s_barrier")
    stamp(3)
    QB, S0, AO, O0 = 80, 88, 104, 120
    A(f"ds_read_b128 v[{QB}:{QB+3}], v12\nds_read_b128 v[{QB+4}:{QB+7}], v14")
    for j in range(att_pre, 16): att_load(j)
    A(f"s_waitcnt vmcnt(8) lgkmcnt(0)")
    for t in range(2):
        for u in range(4):
            c = "0" if t == 0 else f"v[{S0+4*u}:{S0+4*u+3}]"
            k = K0 + 4 * (2 * u + t)
            A(f"v_mfma_f32_16x16x32_bf16 v[{S0+4*u}:{S0+4*u+3}], v[{k}:{k+3}], v[{QB+4*t}:{QB+4*t+3}], {c}")
    for u in range(4): A(f"v_mov_b32_dpp v{16+u}, v{S0+4*u} quad_perm:[0,0,0,0] {DPPM}")
    for r in range(1, 4):
        for u in range(4): A(f"v_add_f32_dpp v{16+u}, v{S0+4*u+r}, v{16+u} quad_perm:[{r},{r},{r},{r}] {DPPM}")
    for u in range(4): bf16r(16 + u, 16 + u)
    A("v_max3_f32 v20, v16, v17, v18\nv_max_f32 v20, v20, v19")
    cross_allreduce("v_max_f32", [20], [22])
    CEXP = f2u(0.0625 * math.log2(math.e))
    A(f"s_mov_b32 s55, 0x{CEXP:x}")
    for u in range(4): A(f"v_sub_f32 v{16+u}, v{16+u}, v20")
    for u in range(4): A(f"v_mul_f32 v{16+u}, s55, v{16+u}")
    for u in range(4): A(f"v_exp_f32 v{16+u}, v{16+u}")
    A("v_add_f32 v21, v16, v17\nv_add_f32 v22, v18, v19\nv_add_f32 v21, v21, v22")
    cross_allreduce("v_add_f32", [21], [22])
    A("s_mov_b64 exec, 0x101\nds_write_b64 v15, v[20:21]\ns_mov_b64 exec, -1")
    for u in range(4): A(f"v_cvt_pk_bf16_f32 v{16+u}, v{16+u}, v{16+u}")
    A("s_waitcnt lgkmcnt(0)\ns_barrier")
    for u in range(4):
        for d in range(4): A(f"v_and_b32 v{AO+4*u+d}, v{16+u}, v{4+d}")
    stamp(4)
    for u in range(4):
        for t in range(2):
            j = 2 * u + t
            A(f"s_waitcnt vmcnt({7-j})")
            c = "0" if u == 0 else f"v[{O0+4*t}:{O0+4*t+3}]"
            A(f"v_mfma_f32_16x16x32_bf16 v[{O0+4*t}:{O0+4*t+3}], v[{AO+4*u}:{AO+4*u+3}], v[{V0+4*j}:{V0+4*j+3}], {c}")
    stamp(5)
    A(f"ds_write_b128 v13, v[{O0}:{O0+3}]\nds_write_b128 v3, v[{O0+4}:{O0+7}]")
    A(f"""s_lshl_b32 s54, s3, 10
    v_lshlrev_b32 v8, 4, v0
    v_add_u32 v8, s54, v8
    s_lshl_b32 s53, s3, 6
    v_mov_b32 v9, s53
    v_lshrrev_b32 v10, 5, v0
    v_lshlrev_b32 v10, 9, v10
    v_lshl_add_u32 v10, v1, 5, v10
    v_and_b32 v11, 16, v0
    v_add3_u32 v10, v10, v11, s54
    s_mul_i32 s53, s28, 24
    s_add_u32 s53, s53, s48
    s_lshl_b32 s53, s53, 11
    s_add_u32 s53, s53, {OA}
    s_add_u32 s54, s53, {COPYB}
    v_mov_b32 v11, 0xfff
    s_add_u32 s30, s30, 1
    s_waitcnt lgkmcnt(0)
    s_barrier
    s_cmp_ge_u32 s3, 2
    s_cbranch_scc1 L_fin""")
    for k in range(3): A(f"ds_read_b128 v[{16+4*k}:{19+4*k}], v9 offset:{L_FAC+16*k}")
    for w in range(11): A(f"ds_read_b128 v[{32+4*w}:{35+4*w}], v8 offset:{L_PART+2048*w}")
    for w in range(11):
        A(f"s_waitcnt lgkmcnt({0 if diag else 10-w})")
        f = 16 + (w & ~1); sel = w & 1
        for hh in range(2):
            src = 32 + 4 * w + 2 * hh
            if w == 0: A(f"v_pk_mul_f32 v[{28+2*hh}:{29+2*hh}], v[{src}:{src+1}], v[{f}:{f+1}] op_sel:[0,{sel}] op_sel_hi:[1,{sel}]")
            else: A(f"v_pk_fma_f32 v[{28+2*hh}:{29+2*hh}], v[{src}:{src+1}], v[{f}:{f+1}], v[{28+2*hh}:{29+2*hh}] op_sel:[0,{sel},0] op_sel_hi:[1,{sel},1]")
    for r in range(4): A(f"v_bfi_b32 v{28+r}, v11, s30, v{28+r}")
    if dual: A("buffer_store_dwordx4 v[28:31], v10, s[44:47], s53 offen")
    A(f"buffer_store_dwordx4 v[28:31], v10, s[44:47], s{54 if dual else 53} offen sc1")
    stamp(6)
    finish()
    A(f"""L_att_idle:
    v_mov_b32 v16, 0
    v_mov_b32 v17, 0
    v_mov_b32 v18, 0
    v_mov_b32 v19, 0
    v_lshlrev_b32 v8, 4, v0
    ds_write_b128 v8, v[16:19] offset:{L_PART+10*2048}
    ds_write_b128 v8, v[16:19] offset:{L_PART+10*2048+1024}
    v_and_b32 v8, 1, v0
    v_lshlrev_b32 v8, 7, v8
    v_mov_b32 v16, 0xff7f0000
    ds_write_b64 v8, v[16:17] offset:{L_ST+80}
    s_waitcnt lgkmcnt(0)""")
    if diag: srd(44, 26, 0x20000000)
    finish()
    A("L_att_helper:\ns_waitcnt lgkmcnt(0)")
    ws_setup()
    A(f"""v_lshlrev_b32 v8, 4, v0
    v_lshlrev_b32 v9, 3, v0
    s_lshl_b32 s53, s28, 11
    s_add_u32 s53, s53, {QA}
    s_mov_b32 s54, 0x07060302""")
    tag_ready()
    stamp(1)
    poll("L_pq", [(16, 8, 0), (20, 8, 1024)], 53, 59, 24, dual)
    stamp(2)
    A(f"""v_perm_b32 v24, v17, v16, s54
    v_perm_b32 v25, v19, v18, s54
    v_perm_b32 v26, v21, v20, s54
    v_perm_b32 v27, v23, v22, s54
    ds_write_b64 v9, v[24:25] offset:{L_Q}
    ds_write_b64 v9, v[26:27] offset:{L_Q+512}
    s_waitcnt lgkmcnt(0)
    s_barrier
    v_and_b32 v9, 0xf8, v9                ; (lane&31)*8
    v_lshrrev_b32 v10, 1, v9
    v_and_b32 v12, 16, v0
    v_lshlrev_b32 v12, 5, v12             ; h*512
    s_lshl_b32 s53, s28, 10
    s_lshl_b32 s54, s48, 4
    s_add_u32 s53, s53, s54
    s_add_u32 s53, s53, {STA}
    s_add_u32 s54, s53, {COPYB}
    s_mov_b32 s55, 0x{CEXP:x}
    v_mov_b32 v11, 0xfff
    v_mov_b32 v13, 0xff7f0000
    v_cmp_gt_u32 vcc, 11, v1
    s_barrier
    ds_read_b64 v[16:17], v9 offset:{L_ST}
    s_waitcnt lgkmcnt(0)
    v_cndmask_b32 v16, v13, v16, vcc
    v_cndmask_b32 v17, 0, v17, vcc
    v_mov_b32 v20, v16""")
    row_allreduce("v_max_f32", [20])
    A(f"""v_sub_f32 v16, v16, v20
    v_mul_f32 v16, s55, v16
    v_exp_f32 v16, v16
    ds_write_b32 v10, v16 offset:{L_FAC}
    v_mul_f32 v21, v16, v17""")
    row_allreduce("v_add_f32", [21])
    A("""v_bfi_b32 v20, v11, s30, v20
    v_bfi_b32 v21, v11, s30, v21
    v_mov_b32 v22, s30
    v_mov_b32 v23, s30
    s_mov_b64 exec, 0x10001""")
    if dual: A("buffer_store_dwordx4 v[20:23], v12, s[44:47], s53 offen")
    A(f"buffer_store_dwordx4 v[20:23], v12, s[44:47], s{54 if dual else 53} offen sc1")
    A("s_mov_b64 exec, -1\ns_waitcnt lgkmcnt(0)")
    stamp(3)
    finish()

    W1, W2 = 32, 96
    A(f"""L_ffn:
    s_sub_u32 s48, s2, 224
    s_cmp_ge_u32 s48, 28
    s_cbranch_scc1 L_final
    s_mov_b32 s57, 1
    s_movk_i32 s49, 3584
    s_lshl_b32 s50, s48, 7
    s_waitcnt lgkmcnt(0)""")
    srd(32, 16, 1605632); srd(36, 18, 1605632); srd(40, 20, 1605632)
    A("""s_branch L_w1
    L_qo:
    s_mov_b32 s57, 0
    s_movk_i32 s49, 8192
    s_lshl_b32 s48, s28, 2
    s_add_u32 s48, s48, s29                ; p = 4x + j
    s_lshl_b32 s50, s48, 8
    s_waitcnt lgkmcnt(0)""")
    srd(32, 10, 3670016)
    A("""s_add_u32 s36, s10, 128
    s_addc_u32 s37, s11, 0""")
    A(f"s_mov_b32 s38, {3670016-128}\ns_mov_b32 s39, 0x20000")
    srd(40, 12, 3670016)
    A(f"""L_w1:
    s_cmp_gt_u32 s3, 8
    s_cbranch_scc1 L_exit_early
    s_cmp_eq_u32 s3, 8
    s_cbranch_scc1 L_ln
    v_lshrrev_b32 v8, 3, v1                ; kk
    v_and_b32 v9, 7, v1
    v_lshlrev_b32 v9, 4, v9                ; nb*16
    v_lshlrev_b32 v10, 2, v2
    v_lshl_add_u32 v10, v8, 4, v10         ; 16kk+4g
    v_mul_u32_u24 v11, s49, v10
    v_add_u32 v11, v11, v9
    s_cmp_eq_u32 s3, 7
    s_cbranch_scc1 L_w1_skip
    s_lshl_b32 s51, s3, 6
    s_mul_i32 s51, s51, s49
    s_add_u32 s51, s51, s50
    s_mul_i32 s52, s49, 29""")
    stamp(1)
    n1 = 0
    for T in range(2):
        for tp in range(4):
            for cb in range(2):
                d = W1 + 4 * n1; n1 += 1
                A(f"buffer_load_dwordx4 v[{d}:{d+3}], v11, s[{32+4*cb}:{35+4*cb}], s51 offen nt")
            if not (T == 1 and tp == 3): A(f"s_add_u32 s51, s51, s{52 if tp == 3 else 49}")
    A("L_w1_skip:")
    ws_setup()
    masks()
    A(f"""v_lshlrev_b32 v12, 2, v10
    s_lshl_b32 s51, s3, 8
    v_add_u32 v12, s51, v12
    v_lshrrev_b32 v8, 3, v1                ; kk
    v_and_b32 v9, 7, v1
    v_lshlrev_b32 v9, 4, v9
    v_and_b32 v14, 1, v2
    v_lshl_add_u32 v14, v14, 7, v9         ; (8hb+nb)*16
    v_lshl_add_u32 v13, v8, 9, v14
    s_lshl_b32 s51, s3, 10
    v_add_u32 v13, s51, v13
    v_mul_u32_u24 v15, 1792, v8
    s_mul_i32 s51, s3, 3584
    v_add3_u32 v15, v15, v14, s51          ; P2 addr
    s_barrier""")
    stamp(2)
    A(f"""s_cmp_eq_u32 s3, 7
    s_cbranch_scc1 L_w1_done
    ds_read_b128 v[16:19], v12 offset:{L_XN}
    ds_read_b128 v[20:23], v12 offset:{L_XN+128}
    s_waitcnt lgkmcnt(0)""")
    D1 = 152
    n1 = 0
    for T in range(2):
        for tp in range(4):
            a = 24 + 4 * (tp & 1)
            for d in range(4): A(f"v_and_b32 v{a+d}, v{16+4*T+tp}, v{4+d}")
            for cb in range(2):
                A(f"s_waitcnt vmcnt({15-n1})")
                c = "0" if n1 < 2 else f"v[{D1+4*cb}:{D1+4*cb+3}]"
                b = W1 + 4 * n1; n1 += 1
                A(f"v_mfma_f32_16x16x32_bf16 v[{D1+4*cb}:{D1+4*cb+3}], v[{a}:{a+3}], v[{b}:{b+3}], {c}")
    exec_set(VALID)
    A(f"ds_write_b128 v13, v[{D1}:{D1+3}] offset:{L_P1}\nds_write_b128 v13, v[{D1+4}:{D1+7}] offset:{L_P1+256}")
    exec_set(-1)
    A("L_w1_done:")
    stamp(3)
    A(f"""v_and_b32 v10, 31, v0
    v_lshlrev_b32 v10, 4, v10
    v_lshrrev_b32 v3, 5, v0                ; pg
    v_mul_u32_u24 v12, {7*512}, v3
    v_add_u32 v12, v12, v10
    v_and_b32 v11, 16, v0
    v_lshlrev_b32 v11, 4, v11              ; cb*256
    v_lshl_add_u32 v11, v9, 1, v11         ; + nb*32
    v_lshl_add_u32 v11, v8, 4, v11
    s_waitcnt lgkmcnt(0)
    s_add_u32 s30, s30, 1
    s_barrier
    s_cmp_lg_u32 s3, 0
    s_cbranch_scc1 L_w1_red_done""")
    for k in range(7): A(f"ds_read_b128 v[{32+4*k}:{35+4*k}], v12 offset:{L_P1+512*k}")
    A("s_waitcnt lgkmcnt(0)")
    for k in range(1, 7):
        A(f"v_pk_add_f32 v[32:33], v[32:33], v[{32+4*k}:{33+4*k}]\nv_pk_add_f32 v[34:35], v[34:35], v[{34+4*k}:{35+4*k}]")
    cross_allreduce("v_add_f32", [32, 33, 34, 35], [36, 37, 38, 39], which=(32,))
    for r in range(4): bf16r(32 + r, 32 + r)
    A(f"""s_cmp_eq_u32 s57, 1
    s_cbranch_scc1 L_ffn_h
    s_and_b32 s51, s30, 0xffff
    v_or_b32 v32, s51, v32
    v_or_b32 v33, s51, v33
    v_or_b32 v34, s51, v34
    v_or_b32 v35, s51, v35
    s_lshl_b32 s51, s48, 9
    s_add_u32 s51, s51, {QA}
    s_add_u32 s52, s51, {COPYB}
    s_mov_b64 exec, 0xffffffff""")
    if dual: A("buffer_store_dwordx4 v[32:35], v11, s[44:47], s51 offen")
    A(f"buffer_store_dwordx4 v[32:35], v11, s[44:47], s{52 if dual else 51} offen sc1")
    A("s_mov_b64 exec, -1\ns_branch L_w1_red_done")
    A("L_ffn_h:")
    for r in range(4): A(f"v_mov_b32 v{36+r}, v{32+r}")
    for r in range(4): A(f"v_permlane16_swap_b32 v{32+r}, v{36+r}")
    c1 = -2.0 * math.sqrt(2.0 / math.pi) * math.log2(math.e)
    A(f"s_mov_b32 s51, 0x{f2u(c1*0.044715):x}\nv_mov_b32 v44, 0x{f2u(c1):x}")
    for r in range(4): A(f"v_mul_f32 v{40+r}, v{32+r}, v{32+r}")
    for r in range(4): A(f"v_fma_f32 v{40+r}, v{40+r}, s51, v44")
    for r in range(4): A(f"v_mul_f32 v{40+r}, v{40+r}, v{32+r}")
    for r in range(4): A(f"v_exp_f32 v{40+r}, v{40+r}")
    for r in range(4): A(f"v_add_f32 v{40+r}, 1.0, v{40+r}")
    for r in range(4): A(f"v_rcp_f32 v{40+r}, v{40+r}")
    for r in range(4): A(f"v_mul_f32 v{40+r}, v{40+r}, v{32+r}")
    for r in range(4): bf16r(40 + r, 40 + r)
    for r in range(4): A(f"v_mul_f32 v{40+r}, v{40+r}, v{36+r}")
    for r in range(4): A(f"v_cvt_pk_bf16_f32 v{40+r}, v{40+r}, v{40+r}")
    A(f"""s_mov_b64 exec, 0xffff
    ds_write_b128 v11, v[40:43] offset:{L_H}
    s_mov_b64 exec, -1
    s_waitcnt lgkmcnt(0)
    L_w1_red_done:""")
    stamp(4)
    D2 = 32
    A("s_cmp_eq_u32 s57, 0\ns_cbranch_scc1 L_qo2")
    A(f"""v_lshl_add_u32 v16, v2, 1, v8
    v_mul_u32_u24 v17, 896, v16
    v_add_u32 v17, v17, v9
    s_lshl_b32 s51, s48, 3
    s_add_u32 s51, s51, s3
    s_mul_i32 s51, s51, {8*896}""")
    for cb in range(7):
        A(f"buffer_load_dwordx4 v[{W2+4*cb}:{W2+4*cb+3}], v17, s[40:43], s51 offen offset:{128*cb} nt")
    A(f"""v_lshlrev_b32 v16, 2, v16
    s_lshl_b32 s51, s3, 5
    v_add_u32 v16, s51, v16
    s_add_u32 s56, s48, 32
    s_barrier
    ds_read_b32 v16, v16 offset:{L_H}
    s_waitcnt lgkmcnt(0)""")
    for d in range(4): A(f"v_and_b32 v{24+d}, v16, v{4+d}")
    for cb in range(7):
        A(f"s_waitcnt vmcnt({6-cb})")
        A(f"v_mfma_f32_16x16x32_bf16 v[{D2+4*cb}:{D2+4*cb+3}], v[24:27], v[{W2+4*cb}:{W2+4*cb+3}], 0")
    A("s_branch L_tail2")
    A(f"""L_qo2:
    v_lshl_add_u32 v16, v2, 2, v8
    v_mul_u32_u24 v17, 896, v16
    v_add_u32 v17, v17, v9
    s_lshl_b32 s51, s48, 3
    s_add_u32 s51, s51, s3
    s_mul_i32 s51, s51, {16*896}""")
    for T in range(2):
        for cb in range(7):
            d = W2 + 4 * (7 * T + cb)
            A(f"buffer_load_dwordx4 v[{d}:{d+3}], v17, s[40:43], s51 offen offset:{1792*T+128*cb} nt")
            if wo_depth: A(f"s_waitcnt vmcnt({wo_depth})")
    A(f"""v_mul_u32_u24 v16, 0x0202, v8
    v_add_u32 v16, 0x0100, v16
    v_lshl_or_b32 v16, v16, 16, v16
    v_mov_b32 v18, 0x0c0c0c0c""")
    for d in range(4): A(f"v_bfi_b32 v{60+d}, v{4+d}, v16, v18")
    A(f"""v_lshlrev_b32 v16, 4, v1
    v_add_u32 v17, 256, v9
    v_lshlrev_b32 v18, 4, v2
    v_lshl_add_u32 v19, v17, 7, v18
    v_lshl_add_u32 v18, v16, 7, v18
    s_lshr_b32 s51, s48, 1
    s_lshl_b32 s51, s51, 9
    s_add_u32 s51, s51, {STA}               ; x*1024 + h*512
    s_mov_b32 s55, 0x{CEXP:x}
    s_mov_b32 s56, s48
    v_mov_b32 v3, 0xfff
    s_movk_i32 s54, 0x800""")
    poll("L_pst", [(64, 16, 0), (68, 17, 0)], 51, 58, 72, dual)
    A(f"""v_bfi_b32 v64, v3, 0, v64
    v_bfi_b32 v68, v3, 0, v68
    v_bfi_b32 v65, v3, s54, v65
    v_bfi_b32 v69, v3, s54, v69
    v_max_f32 v72, v64, v68""")
    row_allreduce("v_max_f32", [72])
    A(f"""v_sub_f32 v64, v64, v72
    v_sub_f32 v68, v68, v72
    v_mul_f32 v64, s55, v64
    v_mul_f32 v68, s55, v68
    v_exp_f32 v64, v64
    v_exp_f32 v68, v68
    v_cmp_gt_u32 vcc, 8, v1
    s_nop 1
    v_cndmask_b32 v68, 0, v68, vcc
    v_mul_f32 v72, v64, v65
    v_fmac_f32 v72, v68, v69""")
    row_allreduce("v_add_f32", [72])
    A(f"""v_rcp_f32 v72, v72
    v_mul_f32 v76, v64, v72
    v_mul_f32 v77, v68, v72
    s_mul_i32 s51, s28, {24*2048}
    s_and_b32 s52, s29, 3
    s_lshl_b32 s52, s52, 9
    s_add_u32 s51, s51, s52
    s_lshl_b32 s52, s3, 6
    s_add_u32 s51, s51, s52
    s_add_u32 s51, s51, {OA}""")
    stamp(5)
    poll("L_po", [(64, 18, 0), (68, 19, 0)], 51, 58, 72, dual)
    stamp(6)
    for r in range(8): A(f"v_bfi_b32 v{64+r}, v3, s54, v{64+r}")
    A("""v_pk_mul_f32 v[64:65], v[64:65], v[76:77] op_sel:[0,0] op_sel_hi:[1,0]
    v_pk_mul_f32 v[66:67], v[66:67], v[76:77] op_sel:[0,0] op_sel_hi:[1,0]
    v_pk_fma_f32 v[64:65], v[68:69], v[76:77], v[64:65] op_sel:[0,1,0] op_sel_hi:[1,1,1]
    v_pk_fma_f32 v[66:67], v[70:71], v[76:77], v[66:67] op_sel:[0,1,0] op_sel_hi:[1,1,1]""")
    row_allreduce("v_add_f32", [64, 65, 66, 67])
    A("v_cvt_pk_bf16_f32 v64, v64, v65\nv_cvt_pk_bf16_f32 v66, v66, v67")
    for T in range(2):
        for d in range(4): A(f"v_perm_b32 v{24+4*T+d}, v{64+2*T}, v{64+2*T}, v{60+d}")
    for T in range(2):
        for cb in range(7):
            b = W2 + 4 * (7 * T + cb)
            c = "0" if T == 0 else f"v[{D2+4*cb}:{D2+4*cb+3}]"
            A(f"v_mfma_f32_16x16x32_bf16 v[{D2+4*cb}:{D2+4*cb+3}], v[{24+4*T}:{27+4*T}], v[{b}:{b+3}], {c}")
    A("L_tail2:\ns_nop 7")
    exec_set(VALID)
    for cb in range(7): A(f"ds_write_b128 v15, v[{D2+4*cb}:{D2+4*cb+3}] offset:{L_P2+256*cb}")
    exec_set(-1)
    A(f"""v_lshrrev_b32 v16, 5, v0
    v_mul_u32_u24 v16, {8*1792}, v16
    s_lshl_b32 s51, s3, 9
    v_add3_u32 v16, v16, v10, s51
    s_mul_i32 s52, s56, 1792
    s_add_u32 s52, s52, s51
    s_add_u32 s52, s52, {OUTP}
    v_mov_b32 v3, 0xfff
    s_cmp_eq_u32 s3, 3
    s_cselect_b32 s53, 0xffff, -1
    s_waitcnt lgkmcnt(0)
    s_barrier
    s_cmp_ge_u32 s3, 4
    s_cbranch_scc1 L_fin""")
    for k in range(8): A(f"ds_read_b128 v[{32+4*k}:{35+4*k}], v16 offset:{L_P2+1792*k}")
    for k in range(1, 8):
        A(f"s_waitcnt lgkmcnt({0 if diag else 7-k})")
        A(f"v_pk_add_f32 v[32:33], v[32:33], v[{32+4*k}:{33+4*k}]\nv_pk_add_f32 v[34:35], v[34:35], v[{34+4*k}:{35+4*k}]")
    cross_allreduce("v_add_f32", [32, 33, 34, 35], [36, 37, 38, 39], which=(32,))
    for r in range(4): A(f"v_bfi_b32 v{32+r}, v3, s30, v{32+r}")
    A("s_mov_b32 exec_lo, s53\ns_mov_b32 exec_hi, 0")
    A("buffer_store_dwordx4 v[32:35], v11, s[44:47], s52 offen sc1")
    A("s_mov_b64 exec, -1")
    stamp(7)
    finish()
    A("L_ln:")
    srd(48, 4, 896)
    A("v_lshlrev_b32 v8, 4, v0\nbuffer_load_dwordx4 v[16:19], v8, s[48:51], 0 offen")
    if diag: srd(44, 26, 0x20000000)
    A(f"s_mov_b32 s52, 0xffff0000\ns_mov_b32 s53, 0x{f2u(1.0/448):x}\nv_cmp_gt_u32 vcc, 56, v0\ns_waitcnt vmcnt(0)")
    stamp(1)
    for k in range(4): A(f"v_lshlrev_b32 v{20+2*k}, 16, v{16+k}\nv_and_b32 v{21+2*k}, s52, v{16+k}")
    A("v_add_f32 v28, v20, v21")
    for k in range(2, 8): A(f"v_add_f32 v28, v28, v{20+k}")
    row_allreduce("v_add_f32", [28]); cross_allreduce("v_add_f32", [28], [29])
    A("v_mul_f32 v28, s53, v28")
    for k in range(8): A(f"v_sub_f32 v{32+k}, v{20+k}, v28")
    A("v_mul_f32 v30, v32, v32")
    for k in range(1, 8): A(f"v_fmac_f32 v30, v{32+k}, v{32+k}")
    A("v_cndmask_b32 v30, 0, v30, vcc")
    row_allreduce("v_add_f32", [30]); cross_allreduce("v_add_f32", [30], [29])
    A("v_mul_f32 v30, s53, v30"); bf16r(30, 30)
    A(f"v_add_f32 v30, 0x{f2u(1e-5):x}, v30"); bf16r(30, 30)
    A("v_sqrt_f32 v30, v30"); bf16r(30, 30)
    A("v_rcp_f32 v31, v30"); bf16r(28, 28)
    for k in range(8): A(f"v_sub_f32 v{20+k}, v{20+k}, v28")
    for k in range(8): bf16r(20 + k, 20 + k)
    for k in range(8): A(f"v_mul_f32 v{32+k}, v{20+k}, v31")
    for k in range(8): A(f"v_fma_f32 v{20+k}, -v{32+k}, v30, v{20+k}")
    for k in range(8): A(f"v_fmac_f32 v{32+k}, v{20+k}, v31")
    for k in range(8): A(f"v_cvt_pk_bf16_f32 v{32+k}, v{32+k}, v{32+k}")
    A(f"""v_lshlrev_b32 v8, 5, v0
    s_mov_b64 exec, vcc
    ds_write_b128 v8, v[32:35] offset:{L_XN}
    ds_write_b128 v8, v[36:39] offset:{L_XN+16}
    s_mov_b64 exec, -1
    s_waitcnt lgkmcnt(0)""")
    stamp(2)
    finish()
    A("L_exit_early:")
    if diag: srd(44, 26, 0x20000000)
    finish()

    A(f"""L_final:
    s_sub_u32 s48, s48, 28
    s_waitcnt lgkmcnt(0)""")
    ws_setup()
    A(f"""s_cmp_ge_u32 s3, 7
    s_cbranch_scc1 L_fin
    s_mul_i32 s49, s48, 7
    s_add_u32 s49, s49, s3                 ; q index 0..27""")
    srd(32, 4, 896); srd(36, 22, 896)
    A(f"""v_lshlrev_b32 v8, 3, v2
    s_lshl_b32 s50, s49, 5
    buffer_load_dwordx2 v[10:11], v8, s[32:35], s50 offen
    v_mul_u32_u24 v16, 1792, v1
    v_lshl_add_u32 v16, v2, 4, v16         ; s4*1792 + g*16
    v_add_u32 v17, {16*1792}, v16
    v_cmp_gt_u32 s[52:53], 12, v1
    s_nop 1
    v_cndmask_b32 v18, v16, v17, s[52:53]
    s_lshl_b32 s51, s49, 6
    s_add_u32 s51, s51, {OUTP}
    s_add_u32 s55, s51, {32*1792}
    v_mov_b32 v3, 0xfff
    s_movk_i32 s54, 0x800""")
    tag_ready()
    A(f"""s_barrier
    s_cmp_lg_u32 s3, 0
    s_cbranch_scc1 L_alive_done
    v_lshlrev_b32 v9, 7, v0
    s_lshl_b32 s56, s48, 7
    s_add_u32 s56, s56, {ALIVE}
    s_cmp_eq_u32 s48, 0
    s_cbranch_scc1 L_alive_poll
    v_mov_b32 v20, s30
    v_mov_b32 v21, s30
    v_mov_b32 v22, s30
    v_mov_b32 v23, s30
    s_mov_b64 exec, 1
    buffer_store_dwordx4 v[20:23], v9, s[44:47], s56 offen sc1
    s_mov_b64 exec, -1
    s_waitcnt vmcnt(0)
    s_branch L_alive_done
    L_alive_poll:
    s_mov_b64 exec, 0xe""")
    poll("L_pal", [(20, 9, 0)], 56, 59, 28, False)
    A("L_alive_done:")
    stamp(1)
    poll("L_pf", [(20, 16, 0), (24, 18, 0)], 55, 58, 28, False)
    stamp(2)
    for r in range(8): A(f"v_bfi_b32 v{20+r}, v3, s54, v{20+r}")
    for r in range(4): A(f"v_cndmask_b32 v{24+r}, 0, v{24+r}, s[52:53]")
    for r in range(4): A(f"v_add_f32 v{32+r}, v{20+r}, v{24+r}")
    row_allreduce("v_add_f32", [32, 33, 34, 35])
    for r in range(4): bf16r(32 + r, 32 + r)
    A(f"s_mov_b32 s56, 0x{f2u(-math.log2(math.e)):x}")
    for r in range(4): A(f"v_mul_f32 v{36+r}, s56, v{32+r}")
    for r in range(4): A(f"v_exp_f32 v{36+r}, v{36+r}")
    for r in range(4): A(f"v_add_f32 v{36+r}, 1.0, v{36+r}")
    for r in range(4): A(f"v_rcp_f32 v{36+r}, v{36+r}")
    for r in range(4): A(f"v_mul_f32 v{32+r}, v{32+r}, v{36+r}")
    for r in range(4): bf16r(32 + r, 32 + r)
    A("""v_lshlrev_b32 v12, 16, v10
    v_and_b32 v13, 0xffff0000, v10
    v_lshlrev_b32 v14, 16, v11
    v_and_b32 v15, 0xffff0000, v11""")
    stamp(3)
    poll("L_pa", [(20, 16, 0), (24, 17, 0)], 51, 58, 28, False)
    stamp(4)
    for r in range(8): A(f"v_bfi_b32 v{20+r}, v3, s54, v{20+r}")
    for r in range(4): A(f"v_add_f32 v{20+r}, v{20+r}, v{24+r}")
    row_allreduce("v_add_f32", [20, 21, 22, 23])
    for r in range(4): bf16r(20 + r, 20 + r)
    for r in range(4): A(f"v_mul_f32 v{20+r}, v{20+r}, v{32+r}")
    for r in range(4): bf16r(20 + r, 20 + r)
    for r in range(4): A(f"v_add_f32 v{20+r}, v{20+r}, v{12+r}")
    A("v_cvt_pk_bf16_f32 v20, v20, v21\nv_cvt_pk_bf16_f32 v21, v22, v23")
    exec_set(0x0001000100010001)
    A("buffer_store_dwordx2 v[20:21], v8, s[36:39], s50 offen")
    exec_set(-1)
    stamp(5)
    A(f"""s_or_b32 s50, s48, s3
    s_cmp_lg_u32 s50, 0
    s_cbranch_scc1 L_fin
    v_mov_b32 v8, {EPOCH}
    v_mov_b32 v9, s30
    s_mov_b64 exec, 1
    buffer_store_dword v9, v8, s[44:47], 0 offen sc1
    s_mov_b64 exec, -1""")
    finish()
    A("L_fin:")
    if diag:
        A(f"""s_waitcnt lgkmcnt(0)
        s_mul_i32 s50, s2, {NW}
        s_add_u32 s50, s50, s3
        s_lshl_b32 s50, s50, 6
        s_add_u32 s50, s50, {STAMP_OFF}
        v_mov_b32 v8, 0
        s_mov_b64 exec, 1""")
        for k in range(0, 8, 2):
            A(f"v_mov_b32 v12, s{64+2*k}\nv_mov_b32 v13, s{65+2*k}\nv_mov_b32 v14, s{66+2*k}\nv_mov_b32 v15, s{67+2*k}")
            A(f"buffer_store_dwordx4 v[12:15], v8, s[44:47], s50 offen offset:{8*k}\ns_nop 1")
    A(f"""L_end:
    s_endpgm
.section .rodata,"a"
.p2align 6
.amdhsa_kernel {KN}_kernel
  .amdhsa_next_free_vgpr 160
  .amdhsa_next_free_sgpr 96
  .amdhsa_accum_offset 160
  .amdhsa_group_segment_fixed_size 0
  .amdhsa_kernarg_size 96
  .amdhsa_user_sgpr_count 2
  .amdhsa_user_sgpr_kernarg_segment_ptr 1
  .amdhsa_system_sgpr_workgroup_id_x 1
.end_amdhsa_kernel""")
    open(fname, "w").write(A.text())
    return fname
if __name__ == "__main__":
    gen("v1.s"); gen("v1d.s", diag=True)
```

```python
import sys, math, struct
from emit import Emit
KN = "recurrent_scan__sliding_block_cached__geglu_ffn__decode"
def f2u(x): return struct.unpack("<I", struct.pack("<f", x))[0]

EPOCH = 0; QA = 0x10000; STA = 0x20000; XCH = 0x30000; OA = 0x40000; OUTP = 0xA0000; COPYB = 0x100000
STAMP_OFF = 256 << 20
L_Q = 0; L_ST = 1024; L_FAC = 1280; L_FLG = 1536; L_PART = 2048
L_XN = 0; L_H = 1792; L_O = 1920; L_CNT = 2048; L_XP = 2304; L_P1 = 4096; L_P1B = 8192
LDS_BYTES = 32768
NW = 12
DPPM = "row_mask:0xf bank_mask:0xf"
VALID = 0xFF00FF0000FF00FF
CEXP = f2u(0.0625 * math.log2(math.e))
X = None
HEAD = """; Kernarg layout for this problem (96 bytes, ptrs only, base s[0:1]):
; @launch grid=(256,1,1) block=(%d,1,1) lds=%d
;
"""

def gen(fname, diag=False, limit=1000000,
        sched=(X, X, 1, 1, 1, 1, 1, 1, 1, 1, 1, 1, 1, 1, 1, 1), sched2=(X, X, 1, 1, 1, 1, 1, 1, 1, 1, 2, 2, 2, 3, 3, X), qk_from=9, setup_at=3,
        wdepth=5, wqd=3):
    A = Emit()
    def note(t): A("; " + t)
    def stamp(k):
        if diag: A(f"s_memrealtime s[{64+2*k}:{65+2*k}]")
    def srd(d, p, n):
        A(f"s_mov_b32 s{d}, s{p}\ns_mov_b32 s{d+1}, s{p+1}\ns_mov_b32 s{d+2}, {n}\ns_mov_b32 s{d+3}, 0x20000")
    def exec_set(val):
        if val == -1: A("s_mov_b64 exec, -1")
        elif val < (1 << 31): A(f"s_mov_b64 exec, 0x{val:x}")
        else: A(f"s_mov_b32 exec_lo, 0x{val & 0xffffffff:x}\ns_mov_b32 exec_hi, 0x{val >> 32:x}")
    def consts():
        A(f"s_movk_i32 s58, 0xfff\ns_mov_b32 s57, {limit}")
        if diag:
            for k in range(2, 8): A(f"s_mov_b64 s[{64+2*k}:{65+2*k}], 0")
    def ws_setup():
        srd(44, 26, 0x20000000)
        A(f"s_load_dword s30, s[26:27], {EPOCH}")
    def tags(t0=30, t1=31): A(f"s_add_u32 s{t0}, s{t0}, 0x10001\ns_lshr_b32 s{t1}, s{t0}, 16")
    T = lambda r: 30 + ((r & 3) >> 1)
    def masks():
        A("""v_and_b32 v8, 1, v1
        v_lshlrev_b32 v8, 4, v8
        v_mov_b32 v9, 0xffff
        v_lshlrev_b32 v9, v8, v9
        v_bfe_u32 v8, v1, 1, 2""")
        for d in range(4):
            A(f"v_cmp_eq_u32 vcc, {d}, v8\ns_nop 1\nv_cndmask_b32 v{4+d}, 0, v9, vcc")
    def check(regs, t, smask, t0=30, t1=31):
        for k, d in enumerate(regs):
            A(f"v_bitop3_b32 v{t+2*k}, v{d}, v{d+1}, s{t0} bitop3:0x7e")
            A(f"v_bitop3_b32 v{t+2*k+1}, v{d+2}, v{d+3}, s{t1} bitop3:0x7e")
        if len(regs) >= 2: A(f"v_or3_b32 v{t}, v{t}, v{t+2}, v{t+3}")
        if len(regs) == 3: A(f"v_or3_b32 v{t+1}, v{t+1}, v{t+4}, v{t+5}")
        A(f"v_bitop3_b32 v{t}, v{t}, v{t+1}, s{smask} bitop3:0xa8")
        A(f"v_cmp_ne_u32 vcc, 0, v{t}")
    def poll(name, loads, sbase, smask, t, use_dual):
        A(f"s_mov_b32 s61, 0\ns_mov_b32 s60, s{sbase}")
        if use_dual: A(f"s_add_u32 s62, s{sbase}, {COPYB}")
        A(f"{name}:")
        for d, vo, imm in loads:
            A(f"buffer_load_dwordx4 v[{d}:{d+3}], v{vo}, s[44:47], s60 offen {'offset:%d ' % imm if imm else ''}sc1")
        A("s_add_u32 s61, s61, 1")
        if use_dual: A(f"s_and_b32 s63, s61, 15\ns_cmp_eq_u32 s63, 15\ns_cselect_b32 s60, s62, s{sbase}")
        A(f"s_cmp_gt_u32 s61, s57\ns_cselect_b32 s63, 0, s{smask}")
        A("s_waitcnt vmcnt(0)")
        check([l[0] for l in loads], t, 63)
        A(f"s_and_b64 exec, exec, vcc\ns_cbranch_execnz {name}\ns_mov_b64 exec, -1")
    def lds_wait(name, addr, tmp, off, val, sleep=0):
        A(f"""s_mov_b32 s61, 0
        {name}:
        {"s_sleep %d" % sleep if sleep else ""}
        ds_read_b32 v{tmp}, v{addr} offset:{off}
        s_add_u32 s61, s61, 1
        s_cmp_gt_u32 s61, s57
        s_cselect_b32 s62, -1, 0
        s_waitcnt lgkmcnt(0)
        v_readfirstlane_b32 s60, v{tmp}
        s_or_b32 s60, s60, s62
        s_cmp_lt_u32 s60, {val}
        s_cbranch_scc1 {name}""")
    def row_allreduce(op, regs):
        for sh in (8, 4, 2, 1):
            for r in regs: A(f"{op}_dpp v{r}, v{r}, v{r} row_ror:{sh} {DPPM}")
    def cross_allreduce(op, regs, tmps, which=(16, 32)):
        for wch in which:
            for r, t in zip(regs, tmps): A(f"v_mov_b32 v{t}, v{r}")
            for r, t in zip(regs, tmps): A(f"v_permlane{wch}_swap_b32 v{r}, v{t}")
            for r, t in zip(regs, tmps): A(f"{op} v{r}, v{r}, v{t}")
    def bf16r(dst, src): A(f"v_cvt_pk_bf16_f32 v{dst}, 0, v{src}")
    def finish(): A("s_branch L_fin" if diag else "s_endpgm")
    def mfma(d, a, b, c):
        cs = "0" if c is None else f"v[{c}:{c+3}]"
        A(f"v_mfma_f32_16x16x32_bf16 v[{d}:{d+3}], v[{a}:{a+3}], v[{b}:{b+3}], {cs}")
    def lgk(n): A(f"s_waitcnt lgkmcnt({0 if diag else n})")
    def store2(v, vo, sa, sb):
        A(f"buffer_store_dwordx4 v[{v}:{v+3}], v{vo}, s[44:47], s{sa} offen")
        A(f"buffer_store_dwordx4 v[{v}:{v+3}], v{vo}, s[44:47], s{sb} offen sc1")
    B4 = "L_b4" if diag else "L_end"

    A(f""".amdgcn_target "amdgcn-amd-amdhsa--gfx950"
.text
.globl {KN}_kernel
.p2align 8
.type {KN}_kernel,@function
{KN}_kernel:""")
    stamp(0)
    A(f"""s_load_dwordx16 s[4:19], s[0:1], 0
    s_load_dwordx8 s[20:27], s[0:1], 64
    v_readfirstlane_b32 s31, v0
    s_lshr_b32 s29, s2, 3
    s_and_b32 s28, s2, 7
    s_lshl_b32 s35, 1, 17
    s_lshr_b32 s3, s31, 6                  ; wave
    s_sub_u32 s48, s29, 8
    s_cbranch_scc1 L_w
    s_cmp_ge_u32 s48, 24
    s_cbranch_scc1 L_end
    s_cmp_lg_u32 s3, 11
    s_cbranch_scc1 L_att
    s_getpc_b64 s[88:89]
    L_pcref:
    s_sub_u32 s50, s48, 11
    s_lshl_b32 s50, s50, 13
    v_lshl_add_u32 v8, v0, 7, s50
    v_min_u32 v8, L_end-L_pcref, v8
    global_load_dword v52, v8, s[88:89]
    s_branch L_att_helper""")
    K0, V0 = 16, 48
    A(f"""L_att:
    s_mul_i32 s49, s48, 10
    s_add_u32 s49, s49, s3
    s_add_u32 s50, s48, 240
    s_cmp_eq_u32 s3, 10
    s_cselect_b32 s49, s50, s49            ; tile
    s_cmpk_ge_u32 s49, 256
    s_cbranch_scc1 L_att_idle
    s_lshl3_add_u32 s50, s28, 7
    s_lshl_b32 s50, s50, 8
    s_add_u32 s49, s49, s50
    s_lshl_b32 s49, s49, 5
    s_and_b32 s51, s3, 7
    s_add_u32 s49, s49, s51
    s_lshl_b32 s49, s49, 8
    v_and_b32 v9, 3, v0
    v_and_b32 v8, 0x30, v0
    v_lshlrev_b32 v9, 4, v9
    v_lshl_or_b32 v9, v8, 2, v9            ; g*64 + (m&3)*16
    v_and_b32 v10, 12, v0
    v_lshl_or_b32 v10, v10, 9, v9
    s_lshl_b32 s34, 1, 27
    s_xor_b32 s52, s49, 256
    s_waitcnt lgkmcnt(0)
    s_mov_b64 s[32:33], s[6:7]""")
    stamp(1)
    A(f"""buffer_load_dwordx4 v[{K0}:{K0+3}], v10, s[32:35], s49 offen nt
    buffer_load_dwordx4 v[{K0+4}:{K0+7}], v10, s[32:35], s52 offen nt""")
    cur = [sched]
    def att_load(j):
        sr, vo, d = (32, 10, K0 + 4 * j) if j < 8 else (36, 11, V0 + 4 * (j - 8))
        if cur[0][j] is not None: A(f"s_waitcnt vmcnt({cur[0][j]})")
        A(f"s_xor_b32 s52, s49, {(j & 7) * 256}")
        A(f"buffer_load_dwordx4 v[{d}:{d+3}], v{vo}, s[{sr}:{sr+3}], s52 offen nt")
    A("s_barrier\nv_and_b32 v0, 63, v0\nv_and_b32 v1, 15, v0\nv_lshrrev_b32 v2, 4, v0")
    consts()
    srd(36, 8, 134217728)
    ws_setup()
    def att_setup():
        A(f"""v_lshlrev_b32 v11, 11, v2
        v_lshl_add_u32 v11, v1, 4, v11
        v_lshrrev_b32 v8, 3, v1
        v_lshl_add_u32 v12, v8, 9, v9
        s_and_b32 s53, s49, 256
        v_xor_b32 v12, s53, v12
        v_xor_b32 v14, 256, v12                ; t=1
        v_lshlrev_b32 v15, 7, v8
        s_lshl_b32 s54, s3, 3
        s_add_u32 s54, s54, {L_ST}
        v_add_u32 v15, s54, v15
        v_lshrrev_b32 v8, 1, v2
        v_lshlrev_b32 v13, 10, v8
        v_and_b32 v8, 1, v2
        v_lshl_add_u32 v13, v8, 8, v13
        v_lshl_add_u32 v13, v1, 4, v13
        s_lshl_b32 s54, s3, 11
        s_add_u32 s54, s54, {L_PART}
        s_lshl_b32 s53, s53, 1
        s_add_u32 s54, s54, s53
        v_add_u32 v13, s54, v13
        v_xor_b32 v3, 512, v13                 ; t=1""")
        masks()
        A(f"""s_lshl_b32 s54, s3, 10
        v_lshlrev_b32 v128, 4, v0
        v_add_u32 v128, s54, v128
        s_lshl_b32 s53, s3, 6
        v_mov_b32 v129, s53
        v_lshrrev_b32 v130, 5, v0
        v_lshlrev_b32 v130, 9, v130
        v_lshl_add_u32 v130, v1, 5, v130
        v_and_b32 v131, 16, v0
        v_add3_u32 v130, v130, v131, s54
        s_mul_i32 s53, s28, 24
        s_add_u32 s53, s53, s48
        s_lshl_b32 s53, s53, 11
        s_add_u32 s53, s53, {OA}
        s_add_u32 s54, s53, {COPYB}
        v_mov_b32 v131, 0xfff
        v_mov_b32 v8, {L_FLG}
        v_mov_b32 v9, 1
        s_mov_b32 s55, 0x{CEXP:x}               ; log2(e)/16""")
    for j in range(2, qk_from):
        if j == setup_at: att_setup()
        att_load(j)
    for j in range(qk_from, 16):
        att_load(j)
        A(f"s_mov_b32 s56, {j}")
        if j < 15: A("ds_read_b32 v80, v8\ns_waitcnt lgkmcnt(0)\nv_readfirstlane_b32 s60, v80\ns_cmp_lg_u32 s60, 0\ns_cbranch_scc1 L_qk")
    stamp(2)
    lds_wait("L_aq", 8, 80, 0, 1)
    A("L_qk:")
    stamp(3)
    QB, S0, AO, O0 = 80, 88, 104, 120
    A(f"ds_read_b128 v[{QB}:{QB+3}], v12\nds_read_b128 v[{QB+4}:{QB+7}], v14")
    tags()
    A(f"s_waitcnt vmcnt({qk_from-7}) lgkmcnt(0)")
    for t in range(2):
        for u in range(4):
            mfma(S0 + 4 * u, K0 + 4 * (2 * u + t), QB + 4 * t, None if t == 0 else S0 + 4 * u)
    for u in range(4): A(f"v_mov_b32_dpp v{16+u}, v{S0+4*u} quad_perm:[0,0,0,0] {DPPM}")
    for r in range(1, 4):
        for u in range(4): A(f"v_add_f32_dpp v{16+u}, v{S0+4*u+r}, v{16+u} quad_perm:[{r},{r},{r},{r}] {DPPM}")
    for u in range(4): bf16r(16 + u, 16 + u)
    A("v_max3_f32 v20, v16, v17, v18\nv_max_f32 v20, v20, v19")
    cross_allreduce("v_max_f32", [20], [22])
    for u in range(4): A(f"v_sub_f32 v{16+u}, v{16+u}, v20")
    for u in range(4): A(f"v_mul_f32 v{16+u}, s55, v{16+u}")
    for u in range(4): A(f"v_exp_f32 v{16+u}, v{16+u}")
    A("v_add_f32 v21, v16, v17\nv_add_f32 v22, v18, v19\nv_add_f32 v21, v21, v22")
    cross_allreduce("v_add_f32", [21], [22])
    A("s_mov_b64 exec, 0x101\nds_write_b64 v15, v[20:21]\ns_mov_b64 exec, 1\nds_add_u32 v8, v9 offset:4\ns_mov_b64 exec, -1")
    cur[0] = sched2
    for j in range(qk_from + 1, 16):
        A(f"s_cmp_ge_u32 s56, {j}\ns_cbranch_scc1 L_ld{j+1}")
        att_load(j)
        A(f"L_ld{j+1}:")
    A("s_mov_b64 exec, 1\nds_add_u32 v8, v9 offset:8\ns_mov_b64 exec, -1")
    for u in range(4): A(f"v_cvt_pk_bf16_f32 v{16+u}, v{16+u}, v{16+u}")
    for u in range(4):
        for d in range(4): A(f"v_and_b32 v{AO+4*u+d}, v{16+u}, v{4+d}")
    stamp(4)
    for u in range(4):
        for t in range(2):
            j = 2 * u + t
            A(f"s_waitcnt vmcnt({7-j})")
            mfma(O0 + 4 * t, AO + 4 * u, V0 + 4 * j, None if u == 0 else O0 + 4 * t)
    stamp(5)
    A(f"""ds_write_b128 v13, v[{O0}:{O0+3}]
    ds_write_b128 v3, v[{O0+4}:{O0+7}]
    s_cmp_ge_u32 s3, 2
    s_waitcnt lgkmcnt(0)
    s_barrier
    s_cbranch_scc1 {B4}""")
    for k in range(3): A(f"ds_read_b128 v[{16+4*k}:{19+4*k}], v129 offset:{L_FAC+16*k}")
    for w in range(11): A(f"ds_read_b128 v[{32+4*w}:{35+4*w}], v128 offset:{L_PART+2048*w}")
    for w in range(11):
        lgk(10 - w)
        f = 16 + (w & ~1); sel = w & 1
        for hh in range(2):
            src = 32 + 4 * w + 2 * hh
            if w == 0: A(f"v_pk_mul_f32 v[{28+2*hh}:{29+2*hh}], v[{src}:{src+1}], v[{f}:{f+1}] op_sel:[0,{sel}] op_sel_hi:[1,{sel}]")
            else: A(f"v_pk_fma_f32 v[{28+2*hh}:{29+2*hh}], v[{src}:{src+1}], v[{f}:{f+1}], v[{28+2*hh}:{29+2*hh}] op_sel:[0,{sel},0] op_sel_hi:[1,{sel},1]")
    for r in range(4): A(f"v_bfi_b32 v{28+r}, v131, s{T(r)}, v{28+r}")
    store2(28, 130, 53, 54)
    stamp(6)
    A("L_b4:\ns_barrier")
    finish()
    A(f"""L_att_idle:
    v_and_b32 v0, 63, v0
    v_mov_b32 v16, 0
    v_mov_b32 v17, 0
    v_mov_b32 v18, 0
    v_mov_b32 v19, 0
    v_lshlrev_b32 v8, 4, v0
    ds_write_b128 v8, v[16:19] offset:{L_PART+10*2048}
    ds_write_b128 v8, v[16:19] offset:{L_PART+10*2048+1024}
    v_and_b32 v8, 1, v0
    v_lshlrev_b32 v8, 7, v8
    v_mov_b32 v16, 0xff7f0000
    ds_write_b64 v8, v[16:17] offset:{L_ST+80}
    s_barrier
    v_mov_b32 v8, {L_FLG}
    v_mov_b32 v9, 1
    s_mov_b64 exec, 1
    ds_add_u32 v8, v9 offset:4
    ds_add_u32 v8, v9 offset:8
    s_waitcnt lgkmcnt(0)
    s_endpgm""")
    A(f""".p2align 8
    L_att_helper:
    v_and_b32 v0, 63, v0
    v_lshlrev_b32 v8, 4, v0
    v_mov_b32 v14, {L_FLG}
    v_mov_b32 v16, 0
    v_mov_b32 v17, 0
    ds_write_b64 v14, v[16:17]
    ds_write_b64 v14, v[16:17] offset:8
    s_waitcnt lgkmcnt(0)
    s_barrier
    v_and_b32 v1, 15, v0
    v_lshrrev_b32 v2, 4, v0""")
    consts(); ws_setup()
    A(f"""s_mul_i32 s56, s28, 24
    s_add_u32 s56, s56, s48
    s_lshl_b32 s56, s56, 11
    s_add_u32 s56, s56, {OA}
    s_mov_b32 s59, 0xffff
    v_lshlrev_b32 v9, 3, v0
    s_lshl_b32 s53, s28, 11
    s_add_u32 s53, s53, {QA}
    s_mov_b32 s54, 0x07060302
    v_mov_b32 v15, 1
    s_setprio 3
    s_waitcnt lgkmcnt(0)""")
    tags()
    stamp(1)
    poll("L_pq", [(16, 8, 0), (20, 8, 1024)], 53, 59, 24, True)
    stamp(2)
    A(f"""v_perm_b32 v24, v17, v16, s54
    v_perm_b32 v25, v19, v18, s54
    v_perm_b32 v26, v21, v20, s54
    v_perm_b32 v27, v23, v22, s54
    ds_write_b64 v9, v[24:25] offset:{L_Q}
    ds_write_b64 v9, v[26:27] offset:{L_Q+512}
    ds_write_b32 v14, v15
    buffer_load_dwordx4 v[32:35], v8, s[44:47], s56 offen sc1
    buffer_load_dwordx4 v[36:39], v8, s[44:47], s56 offen offset:1024 sc1
    v_and_b32 v9, 0xf8, v9                 ; (lane&31)*8
    v_lshrrev_b32 v10, 1, v9
    v_and_b32 v12, 16, v0
    v_lshlrev_b32 v12, 5, v12              ; h*512
    s_lshl_b32 s53, s28, 10
    s_lshl_b32 s54, s48, 4
    s_add_u32 s53, s53, s54
    s_add_u32 s53, s53, {STA}
    s_add_u32 s54, s53, {COPYB}
    s_mov_b32 s55, 0x{CEXP:x}
    v_mov_b32 v11, 0xfff
    v_mov_b32 v13, 0xff7f0000
    v_cmp_gt_u32 vcc, 11, v1
    s_setprio 0""")
    lds_wait("L_hs", 14, 24, 4, 11)
    A(f"""s_setprio 3
    ds_read_b64 v[40:41], v9 offset:{L_ST}
    s_waitcnt lgkmcnt(0)
    v_cndmask_b32 v40, v13, v40, vcc
    v_cndmask_b32 v41, 0, v41, vcc
    v_mov_b32 v44, v40""")
    row_allreduce("v_max_f32", [44])
    A(f"""v_sub_f32 v40, v40, v44
    v_mul_f32 v40, s55, v40
    v_exp_f32 v40, v40
    ds_write_b32 v10, v40 offset:{L_FAC}
    v_mul_f32 v45, v40, v41""")
    row_allreduce("v_add_f32", [45])
    A("""v_bfi_b32 v44, v11, s30, v44
    v_bfi_b32 v45, v11, s30, v45
    v_mov_b32 v46, s31
    v_mov_b32 v47, s31
    s_mov_b64 exec, 0x10001""")
    store2(44, 12, 53, 54)
    A("s_mov_b64 exec, -1")
    stamp(3)
    A(f"""s_setprio 0
    s_mov_b32 s40, s12
    s_mov_b32 s41, s13
    s_mul_i32 s84, s28, {512*896}
    s_add_u32 s42, s84, {512*896}
    s_mov_b32 s43, 0x20000
    s_mul_i32 s85, s48, {19*1024}
    s_add_u32 s84, s84, s85""")
    lds_wait("L_hp", 14, 24, 8, 11)
    for k in range(19):
        A(f"buffer_load_dwordx4 v[48:51], v8, s[40:43], s84 offen offset:{1024*(k&3)}")
        if k & 3 == 3: A("s_add_u32 s84, s84, 4096\ns_min_u32 s84, s84, s42")
    stamp(5)
    def treduce64(a):
        A(f"v_permlane32_swap_b32 v{a}, v{a+2}\nv_permlane32_swap_b32 v{a+1}, v{a+3}")
        A(f"v_add_f32 v{a}, v{a}, v{a+2}\nv_add_f32 v{a+1}, v{a+1}, v{a+3}")
        A(f"v_permlane16_swap_b32 v{a}, v{a+1}\nv_add_f32 v{a}, v{a}, v{a+1}")
        row_allreduce("v_add_f32", [a])
    srd(32, 4, 896); srd(36, 22, 896)
    A(f"""s_lshl_b32 s50, s28, 4
    s_add_u32 s50, s50, s48
    s_sub_u32 s50, s50, 8
    s_lshl_b32 s49, s50, 3
    v_lshlrev_b32 v8, 1, v2
    v_mul_u32_u24 v16, 1792, v0
    v_min_u32 v17, 55, v0
    v_mul_u32_u24 v17, 1792, v17
    v_cmp_gt_u32 s[52:53], 56, v0
    s_lshl_b32 s51, s50, 4
    s_add_u32 s51, s51, {OUTP}
    s_add_u32 s55, s51, {64*1792}
    v_mov_b32 v3, 0xfff
    s_movk_i32 s54, 0x800
    s_mov_b32 s56, 0x{f2u(-math.log2(math.e)):x}
    s_barrier
    s_cmp_lt_u32 s48, 8
    s_cbranch_scc1 {B4}
    s_cmp_ge_u32 s28, 7
    s_cbranch_scc1 {B4}
    s_barrier
    buffer_load_ushort v10, v8, s[32:35], s49 offen
    buffer_load_dwordx4 v[24:27], v16, s[44:47], s51 offen sc1""")
    poll("L_pf", [(20, 17, 0)], 55, 58, 28, False)
    for r in range(4): A(f"v_bfi_b32 v{20+r}, v3, s54, v{20+r}")
    for r in range(4): A(f"v_cndmask_b32 v{32+r}, 0, v{20+r}, s[52:53]")
    treduce64(32)
    bf16r(32, 32)
    A("""v_mul_f32 v36, s56, v32
    v_exp_f32 v36, v36
    v_add_f32 v36, 1.0, v36
    v_rcp_f32 v36, v36
    v_mul_f32 v32, v32, v36                ; silu""")
    bf16r(32, 32)
    A("v_lshlrev_b32 v12, 16, v10\nv_mov_b32 v9, s30\nv_mov_b32 v13, 0")
    stamp(6)
    poll("L_pa", [(20, 16, 0)], 51, 58, 28, False)
    stamp(7)
    for r in range(4): A(f"v_bfi_b32 v{20+r}, v3, s54, v{20+r}")
    treduce64(20)
    bf16r(20, 20)
    A("v_mul_f32 v20, v20, v32"); bf16r(20, 20)
    A("v_add_f32 v20, v20, v12\nv_cvt_pk_bf16_f32 v20, v20, v20")
    exec_set(0x0001000100010001)
    A(f"""buffer_store_short v20, v8, s[36:39], s49 offen
    s_cmp_lg_u32 s50, 0
    s_cbranch_scc1 L_nobump
    s_mov_b64 exec, 1
    buffer_store_dword v9, v13, s[44:47], 0 offen offset:{EPOCH}
    L_nobump:""")
    stamp(4)
    finish()

    WQ, GU, WD, WO = 32, 64, 96, 112
    XA = 16; D1 = 148
    A(f""".p2align 8
    L_w:
    v_and_b32 v0, 63, v0
    s_lshl3_add_u32 s48, s28, s29
    s_cmp_lg_u32 s3, 0
    s_cbranch_scc1 L_w_nx
    s_setprio 3
    v_lshlrev_b32 v8, 4, v0
    s_movk_i32 s34, 896
    s_waitcnt lgkmcnt(0)
    s_mov_b64 s[32:33], s[4:5]
    buffer_load_dwordx4 v[16:19], v8, s[32:35], 0 offen
    s_branch L_ln
    L_w_nx:
    s_cmp_gt_u32 s3, 8
    s_cbranch_scc1 L_g9
    s_and_b32 s3, s3, 7
    v_and_b32 v9, 7, v0
    v_lshlrev_b32 v9, 4, v9                ; nb*16
    v_and_b32 v8, 8, v0
    v_and_b32 v10, 0x30, v0
    v_lshl_or_b32 v10, v8, 3, v10          ; 64kk+16g
    v_lshl_or_b32 v11, v10, 12, v9
    s_lshl_b32 s50, s3, 19
    s_lshl_b32 s51, s48, 7
    s_add_u32 s50, s50, s51
    s_mov_b32 s34, 3670016
    s_cmp_eq_u32 s3, 7
    s_waitcnt lgkmcnt(0)
    s_mov_b64 s[32:33], s[10:11]
    s_cbranch_scc1 L_w_pro""")
    def gu_load(n):
        tp, cb = n >> 1, n & 1
        A(f"buffer_load_dwordx4 v[{GU+4*n}:{GU+4*n+3}], v12, s[{88+4*cb}:{91+4*cb}], s{82+(tp>>1)} offen {'offset:3584 ' if tp & 1 else ''}nt")
    def wd_load(n): A(f"buffer_load_dwordx4 v[{WD+4*n}:{WD+4*n+3}], v13, s[40:43], s81 offen offset:{896*n} nt")
    def wo_load(n): A(f"buffer_load_dwordx4 v[{WO+4*n}:{WO+4*n+3}], v14, s[36:39], s{80 if n < 4 else 96} offen offset:{896*(n&3)} nt")
    stamp(1)
    for n in range(8):
        A(f"buffer_load_dwordx4 v[{WQ+4*n}:{WQ+4*n+3}], v11, s[32:35], s50 offen nt")
        if n < 7: A("s_addk_i32 s50, 8192")
    A("L_w_pro:\nv_and_b32 v1, 15, v0\nv_lshrrev_b32 v2, 4, v0")
    consts(); ws_setup()
    srd(36, 12, 3670016); srd(40, 20, 1605632); srd(88, 16, 1605632); srd(92, 18, 1605632)
    A(f"""s_mul_i32 s49, s28, 7
    s_add_u32 s49, s49, s29
    s_cmp_gt_u32 s29, 3
    s_subb_u32 s49, s49, 0                 ; f = 7x + j - (j>3)
    s_cmp_lg_u32 s29, 3
    s_cselect_b32 s56, 1, 0
    v_lshrrev_b32 v8, 3, v8                ; kk
    v_mul_u32_u24 v12, {3584//4}, v10
    v_add_u32 v12, v12, v9
    v_mul_u32_u24 v13, {896//4}, v10
    v_lshl_add_u32 v14, v13, 1, v9
    v_add_u32 v13, v13, v9
    s_and_b32 s51, s49, 1
    s_mul_i32 s51, s51, 7
    s_add_u32 s51, s51, s3
    s_mul_i32 s82, s51, {32*3584}
    s_lshr_b32 s52, s49, 1
    s_lshl_b32 s52, s52, 7
    s_add_u32 s82, s82, s52
    s_add_u32 s83, s82, {2*3584}
    s_lshl_b32 s51, s51, 7
    v_add_u32 v156, s51, v10
    s_lshl_b32 s51, s3, 8
    v_lshl_add_u32 v157, v10, 1, s51
    s_lshl_b32 s51, s3, 7
    s_mul_i32 s80, s48, {64*896}
    s_add_u32 s80, s80, s51
    s_add_u32 s96, s80, 3584
    s_mul_i32 s81, s49, {32*896}
    s_add_u32 s81, s81, s51
    v_and_b32 v15, 1, v2
    v_lshl_add_u32 v15, v15, 7, v9         ; (8hb+nb)*16
    s_lshl_b32 s51, s3, 9
    v_lshl_add_u32 v158, v8, 8, v15
    v_add_u32 v158, s51, v158
    s_lshl_b32 s51, s3, 10
    v_lshl_add_u32 v15, v8, 9, v15
    v_add_u32 v15, s51, v15
    v_lshlrev_b32 v3, 1, v9
    v_lshl_add_u32 v159, v8, 4, v3""")
    masks()
    A("s_waitcnt lgkmcnt(0)")
    tags()
    A("s_barrier")
    stamp(2)
    A(f"""s_cmp_eq_u32 s3, 7
    s_cbranch_scc1 L_w7
    ds_read_b128 v[16:19], v157 offset:{L_XN}
    ds_read_b128 v[20:23], v157 offset:{L_XN+16}
    ds_read_b128 v[144:147], v156 offset:{L_XN}
    v_mov_b32 v8, 1
    v_mov_b32 v9, {L_CNT}
    s_cmp_eq_u32 s56, 0
    s_cselect_b32 s90, 0, s90
    s_cselect_b32 s94, 0, s94
    s_cselect_b32 s82, 0, s82
    s_cselect_b32 s83, 0, s83
    s_waitcnt lgkmcnt(0)""")
    mk = lambda f, n: (lambda: f(n))
    loads = [None] * 8 + [mk(gu_load, n) for n in range(8)] + [mk(wd_load, n) for n in range(4)]
    st = [8]
    def issue_upto(inflight_after, consumed):
        while st[0] < len(loads) and st[0] - consumed < inflight_after:
            loads[st[0]](); st[0] += 1
    for n in range(8):
        a = 24 + 4 * (n & 1)
        for d in range(4): A(f"v_and_b32 v{a+d}, v{XA+n}, v{4+d}")
        A(f"s_waitcnt vmcnt({st[0] - n - 1})")
        mfma(D1, a, WQ + 4 * n, None if n == 0 else D1)
        issue_upto(wqd, n + 1)
    exec_set(VALID)
    A(f"ds_write_b128 v158, v[{D1}:{D1+3}] offset:{L_P1}")
    A(f"s_mov_b64 exec, 1\nds_add_u32 v9, v8\ns_mov_b64 exec, -1")
    stamp(3)
    A("s_cmp_eq_u32 s56, 0\ns_cbranch_scc1 L_w_def")
    issue_upto(3, 8)
    for n in range(8):
        tp, cb = n >> 1, n & 1
        a = 24 + 4 * (tp & 1)
        if cb == 0:
            for d in range(4): A(f"v_and_b32 v{a+d}, v{144+tp}, v{4+d}")
        A(f"s_waitcnt vmcnt({st[0] - (8 + n) - 1})")
        mfma(D1 + 4 * cb, a, GU + 4 * n, None if tp == 0 else D1 + 4 * cb)
        issue_upto(wdepth, 8 + n + 1)
    exec_set(VALID)
    A(f"ds_write_b128 v15, v[{D1}:{D1+3}] offset:{L_P1B}\nds_write_b128 v15, v[{D1+4}:{D1+7}] offset:{L_P1B+256}")
    A(f"s_mov_b64 exec, 1\nds_add_u32 v9, v8 offset:4\ns_mov_b64 exec, -1")
    stamp(4)
    issue_upto(99, 0)
    lds_wait("L_wh", 9, 16, 8, 1)
    A(f"""ds_read_b128 v[16:19], v10 offset:{L_H}
    s_mul_i32 s52, s49, 1792
    s_lshl_b32 s51, s3, 8
    s_add_u32 s52, s52, s51
    s_add_u32 s52, s52, {OUTP+64*1792}
    v_mov_b32 v3, 0xfff
    v_and_b32 v20, 7, v0
    v_lshlrev_b32 v20, 5, v20
    v_and_b32 v21, 16, v0
    v_add_u32 v20, v20, v21
    s_waitcnt lgkmcnt(0)""")
    for n in range(4):
        a = 24 + 4 * (n & 1)
        for d in range(4): A(f"v_and_b32 v{a+d}, v{16+n}, v{4+d}")
        A(f"s_waitcnt vmcnt({3-n})")
        mfma(D1, a, WD + 4 * n, None if n == 0 else D1)
    for r in range(4): A(f"v_mov_b32 v{24+r}, v{D1+r}")
    for r in range(4): A(f"v_permlane32_swap_b32 v{D1+r}, v{24+r}")
    for r in range(4): A(f"v_add_f32_dpp v{D1+r}, v{24+r}, v{D1+r} row_ror:8 {DPPM}")
    for r in range(4): A(f"v_bfi_b32 v{D1+r}, v3, s{T(r)}, v{D1+r}")
    A(f"s_mov_b64 exec, 0x00ff00ff\nbuffer_store_dwordx4 v[{D1}:{D1+3}], v20, s[44:47], s52 offen sc1\ns_mov_b64 exec, -1")
    A(f"""L_w_def:
    v_mov_b32 v3, 0xfff
    v_and_b32 v17, 1, v0
    v_lshlrev_b32 v17, 6, v17
    v_lshl_add_u32 v17, v2, 4, v17
    s_mul_i32 s54, s48, 1792
    s_lshl_b32 s51, s3, 8
    s_add_u32 s54, s54, s51
    s_add_u32 s54, s54, {OUTP}
    s_mov_b32 s52, 0x05040100
    s_mov_b32 s53, 0x07060302""")
    lds_wait("L_wt", 9, 16, 16, 1)
    stamp(2)
    for n in range(8): wo_load(n)
    for d in range(4):
        A(f"s_waitcnt vmcnt({6-2*d})")
        for i in range(8):
            A(f"v_perm_b32 v{32+4*i+d}, v{WO+4*(2*d+1)+(i>>1)}, v{WO+4*(2*d)+(i>>1)}, s{52+(i&1)}")
    stamp(5)
    A("s_barrier")
    stamp(6)
    A(f"ds_read_b128 v[24:27], v17 offset:{L_O}\ns_waitcnt lgkmcnt(0)")
    D2 = 64
    for i in (0, 4, 1, 5, 2, 6, 3, 7): mfma(D2 + 4 * i, 24, 32 + 4 * i, None)
    A("s_mov_b64 exec, 0xffff")
    for r in range(4): A(f"v_add_f32_dpp v{28+r}, v{D2+4*r+1}, v{D2+4*r} row_ror:8 row_mask:0xf bank_mask:0x3")
    for r in range(4): A(f"v_add_f32_dpp v{28+r}, v{D2+16+4*r}, v{D2+16+4*r+1} row_ror:8 row_mask:0xf bank_mask:0xc")
    for r in range(4): A(f"v_bfi_b32 v{28+r}, v3, s{T(r)}, v{28+r}")
    A("buffer_store_dwordx4 v[28:31], v159, s[44:47], s54 offen sc1")
    stamp(7)
    finish()
    A(f"""L_g9:
    s_cmp_gt_u32 s3, 9
    s_cbranch_scc1 L_end
    s_lshl_b32 s51, s48, 8
    s_add_u32 s51, s51, {QA}
    s_waitcnt lgkmcnt(0)
    s_load_dword s96, s[26:27], {EPOCH}
    s_add_u32 s80, s26, s51
    s_addc_u32 s81, s27, 0""")
    for k in range(4): A(f"s_load_dword s82, s[80:81], {64*k}" + ("          ; make the q lines L2 resident" if k == 0 else ""))
    consts()
    if diag: A("s_mov_b64 s[66:67], 0")
    A(f"""s_barrier
    s_cmp_eq_u32 s29, 3
    s_cbranch_scc1 L_g1
    s_mul_i32 s52, s28, 7
    s_add_u32 s52, s52, s29
    s_cmp_gt_u32 s29, 3
    s_subb_u32 s52, s52, 0
    s_lshl_b32 s52, s52, 8
    s_add_u32 s52, s52, {XCH}
    s_add_u32 s98, s26, s52
    s_addc_u32 s99, s27, 0
    v_lshlrev_b32 v8, 4, v0
    v_mov_b32 v9, 1
    v_mov_b32 v10, {L_CNT}
    s_movk_i32 s52, 0xff
    s_mov_b64 exec, 0xffff
    s_mov_b32 s61, 0
    s_waitcnt lgkmcnt(0)""")
    tags(96, 97)
    A(f"""L_px:
    s_load_dwordx16 s[4:19], s[98:99], 0 glc
    s_load_dwordx16 s[20:35], s[98:99], 64 glc
    s_load_dwordx16 s[36:51], s[98:99], 128 glc
    s_load_dwordx16 s[80:95], s[98:99], 192 glc
    s_add_u32 s61, s61, 1
    s_cmp_gt_u32 s61, s57
    s_cselect_b32 s63, 0, s52
    s_waitcnt lgkmcnt(0)
    s_xor_b32 s60, s4, s96
    s_and_b32 s60, s60, s63
    s_cbranch_scc1 L_px""")
    for c, base in enumerate((4, 20, 36, 80)):
        for q in range(4):
            for r in range(4): A(f"v_writelane_b32 v{60+r}, s{base+4*q+r}, {4*c+q}")
    check([60], 44, 63, 96, 97)
    A(f"""s_cbranch_vccnz L_px
    ds_write_b128 v8, v[60:63] offset:{L_XP}
    ds_write_b32 v10, v9 offset:12
    s_mov_b64 exec, -1
    s_load_dwordx2 s[26:27], s[0:1], 88
    s_and_b32 s28, s2, 7
    s_lshr_b32 s29, s2, 3
    s_lshl3_add_u32 s48, s28, s29
    s_waitcnt lgkmcnt(0)""")
    stamp(3)
    A(f"""s_branch L_g2
    L_g:
    s_waitcnt lgkmcnt(0)
    s_barrier
    L_g1:
    s_cmp_eq_u32 s29, 3
    s_cselect_b32 s62, 0, 12
    s_cselect_b32 s63, 7, 1
    v_mov_b32 v50, s62""")
    lds_wait("L_gw", 50, 51, L_CNT, "s63", sleep=2)
    A("L_g2:")
    ws_setup()
    A(f"""v_lshrrev_b32 v2, 4, v0
    v_lshrrev_b32 v8, 3, v0
    v_and_b32 v9, 7, v0
    v_lshlrev_b32 v10, 4, v9
    v_lshl_add_u32 v10, v8, 11, v10        ; o voffset
    v_add_u32 v11, {8*2048}, v10
    v_add_u32 v12, {16*2048}, v10
    v_lshlrev_b32 v13, 4, v8
    s_lshr_b32 s51, s48, 2
    s_lshl_b32 s51, s51, 9
    s_add_u32 s51, s51, {STA}
    s_mul_i32 s53, s28, {24*2048}
    s_lshl_b32 s52, s29, 8
    s_add_u32 s53, s53, s52
    s_and_b32 s50, s3, 1
    s_lshl_b32 s52, s50, 7
    s_add_u32 s53, s53, s52
    s_add_u32 s53, s53, {OA}
    s_mov_b32 s55, 0x{CEXP:x}
    v_mov_b32 v3, 0xfff
    s_movk_i32 s54, 0x800
    v_lshlrev_b32 v14, 3, v9
    v_lshl_add_u32 v14, v2, 1, v14
    s_lshl_b32 s52, s50, 6
    v_add_u32 v14, s52, v14
    v_mov_b32 v50, {L_CNT}
    v_mov_b32 v51, 1
    s_waitcnt lgkmcnt(0)""")
    tags()
    poll("L_pst", [(16, 13, 0), (20, 13, 128), (24, 13, 256)], 51, 58, 44, True)
    A("ds_write_b32 v50, v51 offset:16")
    stamp(4)
    A("s_setprio 3")
    for k in range(3): A(f"v_bfi_b32 v{16+4*k}, v3, 0, v{16+4*k}\nv_bfi_b32 v{17+4*k}, v3, s54, v{17+4*k}")
    A(f"v_max3_f32 v28, v16, v20, v24\nv_max_f32_dpp v28, v28, v28 row_ror:8 {DPPM}")
    cross_allreduce("v_max_f32", [28], [29])
    for k in range(3): A(f"v_sub_f32 v{16+4*k}, v{16+4*k}, v28")
    for k in range(3): A(f"v_mul_f32 v{16+4*k}, s55, v{16+4*k}")
    for k in range(3): A(f"v_exp_f32 v{16+4*k}, v{16+4*k}")
    A(f"v_mul_f32 v28, v16, v17\nv_fmac_f32 v28, v20, v21\nv_fmac_f32 v28, v24, v25\nv_add_f32_dpp v28, v28, v28 row_ror:8 {DPPM}")
    cross_allreduce("v_add_f32", [28], [29])
    A("v_rcp_f32 v28, v28")
    for k in range(3): A(f"v_mul_f32 v{16+4*k}, v{16+4*k}, v28")
    stamp(5)
    poll("L_po", [(32, 10, 0), (36, 11, 0), (40, 12, 0)], 53, 58, 44, True)
    stamp(6)
    for r in range(12): A(f"v_bfi_b32 v{32+r}, v3, s54, v{32+r}")
    for hh in range(2): A(f"v_pk_mul_f32 v[{32+2*hh}:{33+2*hh}], v[{32+2*hh}:{33+2*hh}], v[16:17] op_sel:[0,0] op_sel_hi:[1,0]")
    for k in (1, 2):
        for hh in range(2): A(f"v_pk_fma_f32 v[{32+2*hh}:{33+2*hh}], v[{32+4*k+2*hh}:{33+4*k+2*hh}], v[{16+4*k}:{17+4*k}], v[{32+2*hh}:{33+2*hh}] op_sel:[0,0,0] op_sel_hi:[1,0,1]")
    A(f"""v_permlane32_swap_b32 v32, v34
    v_permlane32_swap_b32 v33, v35
    v_add_f32 v32, v32, v34
    v_add_f32 v33, v33, v35
    v_permlane16_swap_b32 v32, v33
    v_add_f32 v32, v32, v33
    v_add_f32_dpp v32, v32, v32 row_ror:8 {DPPM}
    v_cvt_pk_bf16_f32 v32, v32, v32
    ds_write_b16 v14, v32 offset:{L_O}
    s_waitcnt lgkmcnt(0)
    s_barrier""")
    stamp(7)
    finish()
    A(f"""L_w7:
    s_setprio 2
    v_mov_b32 v9, {L_CNT}
    v_lshlrev_b32 v17, 4, v1
    v_lshl_add_u32 v17, v2, 8, v17
    s_lshl_b32 s51, s48, 8
    s_add_u32 s51, s51, {QA}
    s_add_u32 s52, s51, {COPYB}
    s_and_b32 s53, s30, 0xffff
    v_cmp_gt_u32 vcc, 32, v0""")
    if diag: A("s_mov_b64 s[66:67], 0")
    lds_wait("L_wq", 9, 16, 0, 7)
    for k in range(4): A(f"ds_read_b128 v[{32+4*k}:{35+4*k}], v17 offset:{L_P1+1024*k}")
    A("s_waitcnt lgkmcnt(0)")
    for r in range(4): A(f"v_cndmask_b32 v{44+r}, 0, v{44+r}, vcc")
    for k in range(1, 4):
        A(f"v_pk_add_f32 v[32:33], v[32:33], v[{32+4*k}:{33+4*k}]\nv_pk_add_f32 v[34:35], v[34:35], v[{34+4*k}:{35+4*k}]")
    cross_allreduce("v_add_f32", [32, 33, 34, 35], [36, 37, 38, 39])
    for r in range(4): bf16r(32 + r, 32 + r)
    for r in range(4): A(f"v_or_b32 v{32+r}, s{53 if r < 2 else 31}, v{32+r}")
    A("s_mov_b64 exec, 0xffff")
    store2(32, 159, 51, 52)
    A("s_mov_b64 exec, -1")
    stamp(3)
    A(f"""s_cmp_eq_u32 s56, 0
    s_cbranch_scc1 L_w7_end
    s_and_b32 s54, s49, 1
    s_lshl_b32 s54, s54, 6
    v_and_b32 v17, 31, v0
    v_lshlrev_b32 v17, 4, v17
    v_xor_b32 v17, s54, v17
    v_lshrrev_b32 v18, 5, v0
    v_mul_u32_u24 v18, {7*512}, v18
    v_add_u32 v17, v17, v18
    v_and_b32 v18, 0x18, v0
    v_lshlrev_b32 v18, 3, v18
    v_and_b32 v19, 3, v0
    v_lshl_add_u32 v18, v19, 4, v18
    v_lshlrev_b32 v19, 5, v19
    v_and_b32 v20, 8, v0
    v_lshl_add_u32 v19, v20, 1, v19
    s_xor_b32 s51, s49, 1
    s_lshl_b32 s51, s51, 8
    s_add_u32 s51, s51, {XCH}
    v_mov_b32 v3, 0xff""")
    lds_wait("L_wg", 9, 16, 4, 7)
    for k in range(7): A(f"ds_read_b128 v[{32+4*k}:{35+4*k}], v17 offset:{L_P1B+512*k}")
    A("s_waitcnt lgkmcnt(0)")
    for k in range(1, 7):
        A(f"v_pk_add_f32 v[32:33], v[32:33], v[{32+4*k}:{33+4*k}]\nv_pk_add_f32 v[34:35], v[34:35], v[{34+4*k}:{35+4*k}]")
    cross_allreduce("v_add_f32", [32, 33, 34, 35], [36, 37, 38, 39], which=(32,))
    for r in range(4): A(f"v_bfi_b32 v{36+r}, v3, s{T(r)}, v{32+r}")
    exec_set(0xf0f0f0f0)
    A("buffer_store_dwordx4 v[36:39], v18, s[44:47], s51 offen sc1\ns_mov_b64 exec, -1")
    stamp(4)
    lds_wait("L_wx", 9, 16, 12, 1)
    A(f"ds_read_b128 v[60:63], v18 offset:{L_XP}\ns_movk_i32 s55, 0x80\ns_waitcnt lgkmcnt(0)")
    stamp(1)
    for r in range(4): A(f"v_bfi_b32 v{60+r}, v3, s55, v{60+r}")
    for r in range(4): A(f"v_add_f32 v{32+r}, v{32+r}, v{60+r}")
    for r in range(4): bf16r(32 + r, 32 + r)
    for r in range(4): A(f"v_mov_b32 v{40+r}, v{32+r}")
    for r in range(4): A(f"v_permlane16_swap_b32 v{32+r}, v{40+r}")
    c1 = -2.0 * math.sqrt(2.0 / math.pi) * math.log2(math.e)
    A(f"s_mov_b32 s51, 0x{f2u(c1*0.044715):x}\nv_mov_b32 v48, 0x{f2u(c1):x}")
    for r in range(4): A(f"v_mul_f32 v{44+r}, v{32+r}, v{32+r}")
    for r in range(4): A(f"v_fma_f32 v{44+r}, v{44+r}, s51, v48")
    for r in range(4): A(f"v_mul_f32 v{44+r}, v{44+r}, v{32+r}")
    for r in range(4): A(f"v_exp_f32 v{44+r}, v{44+r}")
    for r in range(4): A(f"v_add_f32 v{44+r}, 1.0, v{44+r}")
    for r in range(4): A(f"v_rcp_f32 v{44+r}, v{44+r}")
    for r in range(4): A(f"v_mul_f32 v{44+r}, v{44+r}, v{32+r}")
    for r in range(4): bf16r(44 + r, 44 + r)
    for r in range(4): A(f"v_mul_f32 v{44+r}, v{44+r}, v{40+r}")
    for r in range(4): A(f"v_cvt_pk_bf16_f32 v{44+r}, v{44+r}, v{44+r}")
    A(f"""s_mov_b64 exec, 0x0f0f
    ds_write_b128 v19, v[44:47] offset:{L_H}
    v_mov_b32 v8, 1
    ds_write_b32 v9, v8 offset:8
    s_mov_b64 exec, -1
    L_w7_end:
    s_waitcnt lgkmcnt(0)""")
    if diag: A("s_barrier")
    finish()
    A("L_ln:\ns_mov_b32 s3, 8")
    consts()
    A(f"s_mov_b32 s52, 0xffff0000\ns_mov_b32 s53, 0x{f2u(1.0/448):x}\nv_cmp_gt_u32 vcc, 56, v0")
    A(f"v_lshlrev_b32 v8, 5, v0\nv_lshlrev_b32 v9, 2, v0\nv_mov_b32 v10, 0\nds_write_b32 v9, v10 offset:{L_CNT}\ns_waitcnt vmcnt(0)")
    stamp(1)
    for k in range(4): A(f"v_lshlrev_b32 v{20+2*k}, 16, v{16+k}\nv_and_b32 v{21+2*k}, s52, v{16+k}")
    A("v_add_f32 v28, v20, v21")
    for k in range(2, 8): A(f"v_add_f32 v28, v28, v{20+k}")
    row_allreduce("v_add_f32", [28]); cross_allreduce("v_add_f32", [28], [29])
    A("v_mul_f32 v28, s53, v28")
    for k in range(8): A(f"v_sub_f32 v{32+k}, v{20+k}, v28")
    A("v_mul_f32 v30, v32, v32")
    for k in range(1, 8): A(f"v_fmac_f32 v30, v{32+k}, v{32+k}")
    A("v_cndmask_b32 v30, 0, v30, vcc")
    row_allreduce("v_add_f32", [30]); cross_allreduce("v_add_f32", [30], [29])
    A("v_mul_f32 v30, s53, v30"); bf16r(30, 30)
    A(f"v_add_f32 v30, 0x{f2u(1e-5):x}, v30"); bf16r(30, 30)
    A("v_sqrt_f32 v30, v30"); bf16r(30, 30)
    A("v_rcp_f32 v31, v30"); bf16r(28, 28)
    for k in range(8): A(f"v_sub_f32 v{20+k}, v{20+k}, v28")
    for k in range(8): bf16r(20 + k, 20 + k)
    for k in range(8): A(f"v_mul_f32 v{32+k}, v{20+k}, v31")
    for k in range(8): A(f"v_fma_f32 v{20+k}, -v{32+k}, v30, v{20+k}")
    for k in range(8): A(f"v_fmac_f32 v{32+k}, v{20+k}, v31")
    for k in range(8): A(f"v_cvt_pk_bf16_f32 v{32+k}, v{32+k}, v{32+k}")
    A(f"""s_mov_b64 exec, vcc
    ds_write_b128 v8, v[32:35] offset:{L_XN}
    ds_write_b128 v8, v[36:39] offset:{L_XN+16}
    s_mov_b64 exec, -1
    s_setprio 0""")
    stamp(2)
    A("s_branch L_g")
    if diag:
        A(f"""L_fin:
        s_mov_b64 exec, -1
        s_waitcnt lgkmcnt(0)
        s_sleep 127
        s_sleep 60
        s_mul_i32 s50, s2, {NW}
        s_add_u32 s50, s50, s3
        s_lshl_b32 s50, s50, 6
        s_add_u32 s50, s50, {STAMP_OFF}
        v_mov_b32 v8, 0
        s_mov_b64 exec, 1""")
        for k in range(0, 8, 2):
            A(f"v_mov_b32 v12, s{64+2*k}\nv_mov_b32 v13, s{65+2*k}\nv_mov_b32 v14, s{66+2*k}\nv_mov_b32 v15, s{67+2*k}")
            A(f"buffer_store_dwordx4 v[12:15], v8, s[44:47], s50 offen offset:{8*k}\ns_nop 1")
    A(f"""L_end:
    s_endpgm
.section .rodata,"a"
.p2align 6
.amdhsa_kernel {KN}_kernel
  .amdhsa_next_free_vgpr 160
  .amdhsa_next_free_sgpr 100
  .amdhsa_accum_offset 160
  .amdhsa_group_segment_fixed_size 0
  .amdhsa_kernarg_size 96
  .amdhsa_user_sgpr_count 2
  .amdhsa_user_sgpr_kernarg_segment_ptr 1
  .amdhsa_system_sgpr_workgroup_id_x 1
.end_amdhsa_kernel""")
    open(fname, "w").write(HEAD % (NW * 64, LDS_BYTES) + A.text())
    return fname
if __name__ == "__main__":
    gen("fin2.s"); gen("fin2d.s", diag=True)
```

```python
import sys, math, struct
from emit import Emit
KN = "recurrent_scan__sliding_block_cached__geglu_ffn__decode"
def f2u(x): return struct.unpack("<I", struct.pack("<f", x))[0]

EPOCH = 0; QA = 0x10000; STA = 0x20000; XCH = 0x30000; XCA = 0x38000; OA = 0x40000; OUTP = 0xA0000; COPYB = 0x100000
NOP = 128
STAMP_OFF = 256 << 20
L_Q = 0; L_ST = 1024; L_FAC = 1280; L_O = 1408; L_FLG = 1536; L_PART = 2048; L_WO = 2048 + 11 * 2048
L_XN = 0; L_H = 1792; L_CNT = 2048; L_XP = 2304; L_P1 = 4096; L_P1B = 8192
LDS_BYTES = L_WO + 28 * 1024
NW = 12
DPPM = "row_mask:0xf bank_mask:0xf"
VALID = 0xFF00FF0000FF00FF
CEXP = f2u(0.0625 * math.log2(math.e))
X = None

def gen(fname, diag=False, probe=None, limit=1000000,
        sched=(X, X, 1, 1, 1, 1, 1, 1, 1, 1, 1, 1, 1, 1, 1, 1), sched2=(X, X, 1, 1, 1, 1, 1, 1, 1, 1, 2, 2, 2, 3, 3, X), qk_from=9, setup_at=3,
        wdepth=5, wqd=3, hpf=11, wof="nt", a0=8, fsleep=0, nob='', gwait=True, fspread=False, xcc=False):
    if probe: diag = True
    A = Emit()
    def stamp(k):
        if diag: A(f"s_memrealtime s[{64+2*k}:{65+2*k}]")
    def srd(d, p, n):
        A(f"s_mov_b32 s{d}, s{p}\ns_mov_b32 s{d+1}, s{p+1}\ns_mov_b32 s{d+2}, {n}\ns_mov_b32 s{d+3}, 0x20000")
    def exec_set(val):
        if val == -1: A("s_mov_b64 exec, -1")
        elif val < (1 << 31): A(f"s_mov_b64 exec, 0x{val:x}")
        else: A(f"s_mov_b32 exec_lo, 0x{val & 0xffffffff:x}\ns_mov_b32 exec_hi, 0x{val >> 32:x}")
    def consts():
        A(f"s_movk_i32 s58, 0xfff\ns_mov_b32 s57, {limit}")
        if diag:
            for k in range(2, 8): A(f"s_mov_b64 s[{64+2*k}:{65+2*k}], 0")
    def ws_setup():
        srd(44, 26, 0x20000000)
        A(f"s_load_dword s30, s[26:27], {EPOCH}")
    def masks():
        A("""v_and_b32 v8, 1, v1
        v_lshlrev_b32 v8, 4, v8
        v_mov_b32 v9, 0xffff
        v_lshlrev_b32 v9, v8, v9
        v_bfe_u32 v8, v1, 1, 2""")
        for d in range(4):
            A(f"v_cmp_eq_u32 vcc, {d}, v8\ns_nop 1\nv_cndmask_b32 v{4+d}, 0, v9, vcc")
    def check(regs, t, smask, tag=30):
        for k, d in enumerate(regs):
            A(f"v_bitop3_b32 v{t+2*k}, v{d}, v{d+1}, s{tag} bitop3:0x7e")
            A(f"v_bitop3_b32 v{t+2*k+1}, v{d+2}, v{d+3}, s{tag} bitop3:0x7e")
        if len(regs) >= 2: A(f"v_or3_b32 v{t}, v{t}, v{t+2}, v{t+3}")
        if len(regs) == 3: A(f"v_or3_b32 v{t+1}, v{t+1}, v{t+4}, v{t+5}")
        A(f"v_bitop3_b32 v{t}, v{t}, v{t+1}, s{smask} bitop3:0xa8")
        A(f"v_cmp_ne_u32 vcc, 0, v{t}")
    def poll(name, loads, sbase, smask, t, use_dual, sleep=0):
        A(f"s_mov_b32 s61, 0\ns_mov_b32 s60, s{sbase}")
        if use_dual: A(f"s_add_u32 s62, s{sbase}, {COPYB}")
        A(f"{name}:")
        if sleep: A(f"s_sleep {sleep}")
        for d, vo, imm, *so in loads:
            A(f"buffer_load_dwordx4 v[{d}:{d+3}], v{vo}, s[44:47], s{so[0] if so else 60} offen {'offset:%d ' % imm if imm else ''}sc1")
        A("s_add_u32 s61, s61, 1")
        if use_dual: A(f"s_and_b32 s63, s61, 15\ns_cmp_eq_u32 s63, 15\ns_cselect_b32 s60, s62, s{sbase}")
        A(f"s_cmp_gt_u32 s61, s57\ns_cselect_b32 s63, 0, s{smask}")
        A("s_waitcnt vmcnt(0)")
        check([l[0] for l in loads], t, 63)
        A(f"s_and_b64 exec, exec, vcc\ns_cbranch_execnz {name}\ns_mov_b64 exec, -1")
    def lds_wait(name, addr, tmp, off, val, sleep=0):
        A(f"""s_mov_b32 s61, 0
        {name}:
        {"s_sleep %d" % sleep if sleep else ""}
        ds_read_b32 v{tmp}, v{addr} offset:{off}
        s_add_u32 s61, s61, 1
        s_cmp_gt_u32 s61, s57
        s_cbranch_scc1 {name}_x
        s_waitcnt lgkmcnt(0)
        v_readfirstlane_b32 s60, v{tmp}
        s_cmp_lt_u32 s60, {val}
        s_cbranch_scc1 {name}
        {name}_x:""")
    def row_allreduce(op, regs):
        for sh in (8, 4, 2, 1):
            for r in regs: A(f"{op}_dpp v{r}, v{r}, v{r} row_ror:{sh} {DPPM}")
    def cross_allreduce(op, regs, tmps, which=(16, 32)):
        for wch in which:
            for r, t in zip(regs, tmps): A(f"v_mov_b32 v{t}, v{r}")
            for r, t in zip(regs, tmps): A(f"v_permlane{wch}_swap_b32 v{r}, v{t}")
            for r, t in zip(regs, tmps): A(f"{op} v{r}, v{r}, v{t}")
    def bf16r(dst, src): A(f"v_cvt_pk_bf16_f32 v{dst}, 0, v{src}")
    def finish(): A("s_branch L_fin" if diag else "s_endpgm")
    def mfma(d, a, b, c):
        cs = "0" if c is None else f"v[{c}:{c+3}]"
        A(f"v_mfma_f32_16x16x32_bf16 v[{d}:{d+3}], v[{a}:{a+3}], v[{b}:{b+3}], {cs}")
    def lgk(n): A(f"s_waitcnt lgkmcnt({0 if diag else n})")
    def store2(v, vo, sa, sb, skip=None):
        A(f"buffer_store_dwordx4 v[{v}:{v+3}], v{vo}, s[44:47], s{sa} offen")
        if skip and xcc: A(f"s_cmp_eq_u32 s31, 1\ns_cbranch_scc1 {skip}")
        if {28: "o", 44: "s", 32: "q"}[v] not in nob: A(f"buffer_store_dwordx4 v[{v}:{v+3}], v{vo}, s[44:47], s{sb} offen sc1")
        if skip and xcc: A(f"{skip}:")
    FIN = "L_fin" if diag else "L_end"
    B5 = "L_b5" if diag else "L_end"

    A(f"""; @launch grid=(256,1,1) block=({NW*64},1,1) lds={LDS_BYTES}
.amdgcn_target "amdgcn-amd-amdhsa--gfx950"
.text
.globl {KN}_kernel
.p2align 8
.type {KN}_kernel,@function
{KN}_kernel:""")
    stamp(0)
    A(f"""s_load_dwordx16 s[4:19], s[0:1], 0
    s_load_dwordx8 s[20:27], s[0:1], 64
    v_readfirstlane_b32 s31, v0
    s_lshr_b32 s29, s2, 3
    s_and_b32 s28, s2, 7
    s_lshl_b32 s35, 1, 17
    s_lshr_b32 s3, s31, 6
    s_sub_u32 s48, s29, 8
    s_cbranch_scc1 L_w
    s_cmp_ge_u32 s48, 24
    s_cbranch_scc1 L_end
    s_cmp_lg_u32 s3, 11
    s_cbranch_scc1 L_att
    s_getpc_b64 s[88:89]
    L_pcref:
    s_sub_u32 s50, s48, 11
    s_lshl_b32 s50, s50, 13
    v_lshl_add_u32 v8, v0, 7, s50
    v_min_u32 v8, L_end-L_pcref, v8
    global_load_dword v52, v8, s[88:89]
    s_branch L_att_helper""")
    K0, V0 = 16, 48
    A(f"""L_att:
    s_mul_i32 s49, s48, 10
    s_add_u32 s49, s49, s3
    s_add_u32 s50, s48, 240
    s_cmp_eq_u32 s3, 10
    s_cselect_b32 s49, s50, s49
    s_cmpk_ge_u32 s49, 256
    s_cbranch_scc1 L_att_idle
    s_lshl3_add_u32 s50, s28, 7
    s_lshl_b32 s50, s50, 8
    s_add_u32 s49, s49, s50
    s_lshl_b32 s49, s49, 5
    s_and_b32 s51, s3, 7
    s_add_u32 s49, s49, s51
    s_lshl_b32 s49, s49, 8
    v_and_b32 v9, 3, v0
    v_and_b32 v8, 0x30, v0
    v_lshlrev_b32 v9, 4, v9
    v_lshl_or_b32 v9, v8, 2, v9           ; g*64 + (m&3)*16
    v_and_b32 v10, 12, v0
    v_lshl_or_b32 v10, v10, 9, v9
    s_lshl_b32 s34, 1, 27
    s_xor_b32 s52, s49, 256
    s_waitcnt lgkmcnt(0)
    s_mov_b64 s[32:33], s[6:7]""")
    stamp(1)
    A(f"""buffer_load_dwordx4 v[{K0}:{K0+3}], v10, s[32:35], s49 offen nt
    buffer_load_dwordx4 v[{K0+4}:{K0+7}], v10, s[32:35], s52 offen nt""")
    cur = [sched]
    def att_load(j):
        sr, vo, d = (32, 10, K0 + 4 * j) if j < 8 else (36, 11, V0 + 4 * (j - 8))
        if cur[0][j] is not None: A(f"s_waitcnt vmcnt({cur[0][j]})")
        A(f"s_xor_b32 s52, s49, {(j & 7) * 256}")
        A(f"buffer_load_dwordx4 v[{d}:{d+3}], v{vo}, s[{sr}:{sr+3}], s52 offen nt")
    first = next(j for j in range(16) if sched[j] is not None)
    for j in range(2, first): att_load(j)
    A("s_barrier\nv_and_b32 v0, 63, v0\nv_and_b32 v1, 15, v0\nv_lshrrev_b32 v2, 4, v0")
    consts()
    srd(36, 8, 134217728)
    ws_setup()
    def att_setup():
        A(f"""v_lshlrev_b32 v11, 11, v2
        v_lshl_add_u32 v11, v1, 4, v11
        v_lshrrev_b32 v8, 3, v1
        v_lshl_add_u32 v12, v8, 9, v9
        s_and_b32 s53, s49, 256
        v_xor_b32 v12, s53, v12
        v_xor_b32 v14, 256, v12               ; t=1
        v_lshlrev_b32 v15, 7, v8
        s_lshl_b32 s54, s3, 3
        s_add_u32 s54, s54, {L_ST}
        v_add_u32 v15, s54, v15
        v_lshrrev_b32 v8, 1, v2
        v_lshlrev_b32 v13, 10, v8
        v_and_b32 v8, 1, v2
        v_lshl_add_u32 v13, v8, 8, v13
        v_lshl_add_u32 v13, v1, 4, v13
        s_lshl_b32 s54, s3, 11
        s_add_u32 s54, s54, {L_PART}
        s_lshl_b32 s53, s53, 1
        s_add_u32 s54, s54, s53
        v_add_u32 v13, s54, v13
        v_xor_b32 v3, 512, v13                ; t=1""")
        masks()
        A(f"""s_lshl_b32 s54, s3, 10
        v_lshlrev_b32 v128, 4, v0
        v_add_u32 v128, s54, v128
        s_lshl_b32 s53, s3, 6
        v_mov_b32 v129, s53
        v_lshrrev_b32 v130, 5, v0
        v_lshlrev_b32 v130, 9, v130
        v_lshl_add_u32 v130, v1, 5, v130
        v_and_b32 v131, 16, v0
        v_add3_u32 v130, v130, v131, s54
        s_mul_i32 s53, s28, 24
        s_add_u32 s53, s53, s48
        s_lshl_b32 s53, s53, 11
        s_add_u32 s53, s53, {OA}
        s_add_u32 s54, s53, {COPYB}
        v_mov_b32 v131, 0xfff
        v_mov_b32 v8, {L_FLG}
        v_mov_b32 v9, 1
        s_mov_b32 s55, 0x{CEXP:x}""")
    for j in range(first, qk_from):
        if j == max(first, setup_at): att_setup()
        att_load(j)
    for j in range(qk_from, 16):
        att_load(j)
        A(f"s_mov_b32 s56, {j}")
        if j < 15: A("ds_read_b32 v80, v8\ns_waitcnt lgkmcnt(0)\nv_readfirstlane_b32 s60, v80\ns_cmp_lg_u32 s60, 0\ns_cbranch_scc1 L_qk")
    lds_wait("L_aq", 8, 80, 0, 1)
    A("L_qk:")
    stamp(3)
    QB, S0, AO, O0 = 80, 88, 104, 120
    A(f"ds_read_b128 v[{QB}:{QB+3}], v12\nds_read_b128 v[{QB+4}:{QB+7}], v14\ns_add_u32 s30, s30, 1\ns_mov_b32 s31, s60")
    A(f"s_waitcnt vmcnt({qk_from-7}) lgkmcnt(0)")
    for t in range(2):
        for u in range(4):
            mfma(S0 + 4 * u, K0 + 4 * (2 * u + t), QB + 4 * t, None if t == 0 else S0 + 4 * u)
    for u in range(4): A(f"v_mov_b32_dpp v{16+u}, v{S0+4*u} quad_perm:[0,0,0,0] {DPPM}")
    for r in range(1, 4):
        for u in range(4): A(f"v_add_f32_dpp v{16+u}, v{S0+4*u+r}, v{16+u} quad_perm:[{r},{r},{r},{r}] {DPPM}")
    for u in range(4): bf16r(16 + u, 16 + u)
    A("v_max3_f32 v20, v16, v17, v18\nv_max_f32 v20, v20, v19")
    cross_allreduce("v_max_f32", [20], [22])
    for u in range(4): A(f"v_sub_f32 v{16+u}, v{16+u}, v20")
    for u in range(4): A(f"v_mul_f32 v{16+u}, s55, v{16+u}")
    for u in range(4): A(f"v_exp_f32 v{16+u}, v{16+u}")
    A("v_add_f32 v21, v16, v17\nv_add_f32 v22, v18, v19\nv_add_f32 v21, v21, v22")
    cross_allreduce("v_add_f32", [21], [22])
    A("s_mov_b64 exec, 0x101\nds_write_b64 v15, v[20:21]\ns_mov_b64 exec, 1\nds_add_u32 v8, v9 offset:4\ns_mov_b64 exec, -1")
    cur[0] = sched2
    for j in range(qk_from + 1, 16):
        A(f"s_cmp_ge_u32 s56, {j}\ns_cbranch_scc1 L_ld{j+1}")
        att_load(j)
        A(f"L_ld{j+1}:")
    A("s_mov_b64 exec, 1\nds_add_u32 v8, v9 offset:8\ns_mov_b64 exec, -1")
    for u in range(4): A(f"v_cvt_pk_bf16_f32 v{16+u}, v{16+u}, v{16+u}")
    for u in range(4):
        for d in range(4): A(f"v_and_b32 v{AO+4*u+d}, v{16+u}, v{4+d}")
    A(f"""s_sub_u32 s50, s48, {a0}
    s_sub_u32 s51, s3, 3
    v_mul_u32_u24 v24, {8*896}, v2
    v_lshl_add_u32 v24, v1, 3, v24
    s_lshl_b32 s52, s51, 7
    v_add_u32 v24, s52, v24
    v_lshlrev_b32 v25, 4, v2
    v_lshlrev_b32 v26, 4, v1
    s_lshl4_add_u32 s59, s28, s50
    s_mul_i32 s59, s59, 1792
    s_lshl_b32 s52, s51, 8
    s_add_u32 s59, s59, s52
    s_add_u32 s59, s59, {OUTP}""")
    stamp(4)
    for u in range(4):
        for t in range(2):
            j = 2 * u + t
            A(f"s_waitcnt vmcnt({7-j})")
            mfma(O0 + 4 * t, AO + 4 * u, V0 + 4 * j, None if u == 0 else O0 + 4 * t)
    stamp(5)
    A(f"""ds_write_b128 v13, v[{O0}:{O0+3}]
    ds_write_b128 v3, v[{O0+4}:{O0+7}]
    s_cmp_ge_u32 s3, 2
    s_waitcnt lgkmcnt(0)
    s_barrier
    s_cbranch_scc1 L_o""")
    for k in range(3): A(f"ds_read_b128 v[{16+4*k}:{19+4*k}], v129 offset:{L_FAC+16*k}")
    for w in range(11): A(f"ds_read_b128 v[{32+4*w}:{35+4*w}], v128 offset:{L_PART+2048*w}")
    for w in range(11):
        lgk(10 - w)
        f = 16 + (w & ~1); sel = w & 1
        for hh in range(2):
            src = 32 + 4 * w + 2 * hh
            if w == 0: A(f"v_pk_mul_f32 v[{28+2*hh}:{29+2*hh}], v[{src}:{src+1}], v[{f}:{f+1}] op_sel:[0,{sel}] op_sel_hi:[1,{sel}]")
            else: A(f"v_pk_fma_f32 v[{28+2*hh}:{29+2*hh}], v[{src}:{src+1}], v[{f}:{f+1}], v[{28+2*hh}:{29+2*hh}] op_sel:[0,{sel},0] op_sel_hi:[1,{sel},1]")
    for r in range(4): A(f"v_bfi_b32 v{28+r}, v131, s30, v{28+r}")
    store2(28, 130, 53, 54, "L_nb1")
    A("s_mov_b64 exec, 1\nds_add_u32 v8, v9 offset:16")
    stamp(6)
    A("L_b5:\ns_barrier")
    finish()
    A(f"""L_o:
    s_cmp_ge_u32 s50, 16
    s_cbranch_scc1 {"L_af" if fspread else B5}
    s_cmp_eq_u32 s3, 2
    s_cbranch_scc1 L_g
    s_cmp_ge_u32 s51, 7
    s_cbranch_scc1 {B5}
    s_mov_b32 s52, 0x05040100
    s_mov_b32 s53, 0x07060302""")
    lds_wait("L_ow", 8, 27, 12, 1)
    for e in range(8): A(f"ds_read_b64 v[{32+2*e}:{33+2*e}], v24 offset:{L_WO+896*e}")
    for d in range(4):
        lgk(6 - 2 * d)
        for i in range(4): A(f"v_perm_b32 v{48+4*i+d}, v{32+2*(2*d+1)+(i>>1)}, v{32+2*(2*d)+(i>>1)}, s{52+(i&1)}")
    stamp(2)
    A(f"s_barrier\nds_read_b128 v[28:31], v25 offset:{L_O}\ns_waitcnt lgkmcnt(0)")
    stamp(6)
    for i in range(4): mfma(64 + 4 * i, 28, 48 + 4 * i, None)
    A("s_mov_b64 exec, 0xffff")
    for i in range(4): A(f"v_bfi_b32 v{28+i}, v131, s30, v{64+4*i}")
    A("buffer_store_dwordx4 v[28:31], v26, s[44:47], s59 offen sc1")
    stamp(7)
    finish()
    A(f"""L_g:
    s_setprio 3
    v_mov_b32 v15, v8
    v_lshrrev_b32 v8, 3, v0
    v_and_b32 v9, 7, v0
    v_lshlrev_b32 v13, 4, v8
    s_lshr_b32 s52, s50, 3
    s_lshl1_add_u32 s51, s28, s52
    s_lshl_b32 s51, s51, 9
    s_add_u32 s51, s51, {STA}
    s_mul_i32 s53, s28, {24*2048}
    s_lshl_b32 s52, s50, 7
    s_add_u32 s53, s53, s52
    s_add_u32 s53, s53, {OA}
    s_sub_u32 s53, s53, s51
    v_lshl_add_u32 v10, v9, 4, s53
    v_lshl_add_u32 v10, v8, 11, v10
    v_add_u32 v11, {8*2048}, v10
    v_add_u32 v12, {16*2048}, v10
    s_movk_i32 s54, 0x800
    v_lshlrev_b32 v14, 3, v9
    v_lshl_add_u32 v14, v2, 1, v14""")
    if gwait: lds_wait("L_gw", 15, 27, 16, 2)
    A(f"""s_mov_b32 s61, 0
    s_mov_b32 s60, s51
    s_add_u32 s62, s51, {COPYB}
    L_po:""")
    for k in range(3): A(f"buffer_load_dwordx4 v[{16+4*k}:{19+4*k}], v13, s[44:47], s60 offen offset:{128*k} sc1")
    for k in range(3): A(f"buffer_load_dwordx4 v[{32+4*k}:{35+4*k}], v{10+k}, s[44:47], s60 offen sc1")
    A(f"s_add_u32 s61, s61, 1\ns_and_b32 s63, s61, 15\ns_cmp_eq_u32 s63, 15\ns_cselect_b32 s60, s62, s51\ns_cmp_gt_u32 s61, s57\ns_cselect_b32 s63, 0, s58")
    A("s_waitcnt vmcnt(3)")
    for k in range(6): A(f"v_bitop3_b32 v{52+k}, v{16+2*k}, v{17+2*k}, s30 bitop3:0x7e")
    A("v_or3_b32 v52, v52, v53, v54\nv_or3_b32 v52, v52, v55, v56\ns_waitcnt vmcnt(0)")
    for k in range(6): A(f"v_bitop3_b32 v{44+k}, v{32+2*k}, v{33+2*k}, s30 bitop3:0x7e")
    A("v_or3_b32 v44, v44, v52, v57\nv_or3_b32 v45, v45, v46, v47\nv_or3_b32 v44, v44, v48, v49\nv_bitop3_b32 v44, v44, v45, s63 bitop3:0xa8\nv_cmp_ne_u32 vcc, 0, v44")
    A("s_and_b64 exec, exec, vcc\ns_cbranch_execnz L_po\ns_mov_b64 exec, -1")
    stamp(6)
    for k in range(3): A(f"v_bfi_b32 v{16+4*k}, v131, 0, v{16+4*k}")
    A("v_max3_f32 v28, v16, v20, v24")
    fill = [f"v_bfi_b32 v{32+r}, v131, s54, v{32+r}" for r in range(12)] + [f"v_bfi_b32 v{17+4*k}, v131, s54, v{17+4*k}" for k in range(3)]
    def F(n):
        for _ in range(n):
            if fill: A(fill.pop(0))
    F(2); A(f"v_max_f32_dpp v28, v28, v28 row_ror:8 {DPPM}")
    A("v_mov_b32 v29, v28"); F(2); A("v_permlane16_swap_b32 v28, v29\nv_max_f32 v28, v28, v29")
    A("v_mov_b32 v29, v28"); F(2); A("v_permlane32_swap_b32 v28, v29\nv_max_f32 v28, v28, v29")
    for k in range(3): A(f"v_sub_f32 v{16+4*k}, v{16+4*k}, v28")
    for k in range(3): A(f"v_mul_f32 v{16+4*k}, s55, v{16+4*k}")
    for k in range(3): A(f"v_exp_f32 v{16+4*k}, v{16+4*k}")
    F(99)
    A("v_mul_f32 v28, v16, v17\nv_fmac_f32 v28, v20, v21\nv_fmac_f32 v28, v24, v25")
    for hh in range(2): A(f"v_pk_mul_f32 v[{32+2*hh}:{33+2*hh}], v[{32+2*hh}:{33+2*hh}], v[16:17] op_sel:[0,0] op_sel_hi:[1,0]")
    A(f"v_add_f32_dpp v28, v28, v28 row_ror:8 {DPPM}")
    for hh in range(2): A(f"v_pk_fma_f32 v[{32+2*hh}:{33+2*hh}], v[{36+2*hh}:{37+2*hh}], v[20:21], v[{32+2*hh}:{33+2*hh}] op_sel:[0,0,0] op_sel_hi:[1,0,1]")
    A("v_mov_b32 v29, v28")
    for hh in range(2): A(f"v_pk_fma_f32 v[{32+2*hh}:{33+2*hh}], v[{40+2*hh}:{41+2*hh}], v[24:25], v[{32+2*hh}:{33+2*hh}] op_sel:[0,0,0] op_sel_hi:[1,0,1]")
    A(f"""v_permlane16_swap_b32 v28, v29
    v_add_f32 v28, v28, v29
    v_permlane32_swap_b32 v32, v34
    v_permlane32_swap_b32 v33, v35
    v_mov_b32 v29, v28
    v_add_f32 v32, v32, v34
    v_add_f32 v33, v33, v35
    v_permlane32_swap_b32 v28, v29
    v_add_f32 v28, v28, v29
    v_permlane16_swap_b32 v32, v33
    v_add_f32 v32, v32, v33
    v_rcp_f32 v28, v28
    v_add_f32_dpp v32, v32, v32 row_ror:8 {DPPM}
    v_mul_f32 v32, v32, v28
    v_cvt_pk_bf16_f32 v32, v32, v32
    ds_write_b16 v14, v32 offset:{L_O}
    s_waitcnt lgkmcnt(0)
    s_barrier""")
    stamp(7)
    finish()
    if fspread:
        A(f"""L_af:
        s_cmp_lg_u32 s3, 2
        s_cbranch_scc1 {B5}
        s_barrier
        s_cmp_ge_u32 s28, 7
        s_cbranch_scc1 {FIN}
        s_lshl4_add_u32 s50, s28, s48
        s_add_u32 s50, s50, 8
        s_branch L_f2""")
    A(f"""L_att_idle:
    v_and_b32 v0, 63, v0
    v_mov_b32 v16, 0
    v_mov_b32 v17, 0
    v_mov_b32 v18, 0
    v_mov_b32 v19, 0
    v_lshlrev_b32 v8, 4, v0
    ds_write_b128 v8, v[16:19] offset:{L_PART+10*2048}
    ds_write_b128 v8, v[16:19] offset:{L_PART+10*2048+1024}
    v_and_b32 v8, 1, v0
    v_lshlrev_b32 v8, 7, v8
    v_mov_b32 v16, 0xff7f0000
    ds_write_b64 v8, v[16:17] offset:{L_ST+80}
    s_barrier
    v_mov_b32 v8, {L_FLG}
    v_mov_b32 v9, 1
    s_mov_b64 exec, 1
    ds_add_u32 v8, v9 offset:4
    ds_add_u32 v8, v9 offset:8
    s_waitcnt lgkmcnt(0)
    s_endpgm""")
    A(f""".p2align 8
    L_att_helper:
    v_and_b32 v0, 63, v0
    v_lshlrev_b32 v8, 4, v0
    v_mov_b32 v14, {L_FLG}
    v_mov_b32 v16, 0
    v_mov_b32 v17, 0
    ds_write_b64 v14, v[16:17]
    ds_write_b64 v14, v[16:17] offset:8
    ds_write_b64 v14, v[16:17] offset:16
    s_waitcnt lgkmcnt(0)
    s_barrier
    v_and_b32 v1, 15, v0""")
    consts(); ws_setup()
    A(f"""s_mov_b32 s59, 0xffff
    v_lshlrev_b32 v9, 3, v0
    s_lshl_b32 s53, s28, 11
    s_add_u32 s53, s53, {QA}
    s_mov_b32 s54, 0x07060302
    v_mov_b32 v15, 1
    s_setprio 3
    s_waitcnt lgkmcnt(0)
    s_add_u32 s30, s30, 1""")
    stamp(1)
    if xcc:
        A(f"""s_getreg_b32 s50, hwreg(HW_REG_XCC_ID)
        s_and_b32 s51, s30, 0xffff
        s_lshl_b32 s50, s50, 16
        s_or_b32 s50, s50, s51
        v_mov_b32 v32, s50
        v_mov_b32 v33, s50
        v_mov_b32 v34, s50
        v_mov_b32 v35, s50
        s_lshl_b32 s55, s28, 9
        s_add_u32 s55, s55, {XCA}
        s_lshl4_add_u32 s51, s48, s55
        s_mov_b64 exec, 1
        buffer_store_dwordx4 v[32:35], v8, s[44:47], s51 offen sc1
        s_mov_b64 exec, -1
        v_min_u32 v10, {23*16}, v8""")
        poll("L_pq", [(16, 8, 0), (20, 8, 1024), (36, 10, 0, 55)], 53, 59, 24, True)
        A("v_cmp_ne_u32 vcc, s50, v36\ns_cmp_eq_u64 vcc, 0\ns_cselect_b32 s31, 1, 2\nv_mov_b32 v30, s31")
    else:
        poll("L_pq", [(16, 8, 0), (20, 8, 1024)], 53, 59, 24, True)
        A("v_mov_b32 v30, 1")
    stamp(2)
    A(f"""v_perm_b32 v24, v17, v16, s54
    v_perm_b32 v25, v19, v18, s54
    v_perm_b32 v26, v21, v20, s54
    v_perm_b32 v27, v23, v22, s54
    ds_write_b64 v9, v[24:25] offset:{L_Q}
    ds_write_b64 v9, v[26:27] offset:{L_Q+512}
    ds_write_b32 v14, v30
    v_and_b32 v9, 0xf8, v9                ; (lane&31)*8
    v_lshrrev_b32 v10, 1, v9
    v_and_b32 v12, 16, v0
    v_lshlrev_b32 v12, 5, v12             ; h*512
    s_lshl_b32 s53, s28, 10
    s_lshl_b32 s54, s48, 4
    s_add_u32 s53, s53, s54
    s_add_u32 s53, s53, {STA}
    s_add_u32 s54, s53, {COPYB}
    s_mov_b32 s55, 0x{CEXP:x}
    v_mov_b32 v11, 0xfff
    v_mov_b32 v13, 0xff7f0000
    v_cmp_gt_u32 vcc, 11, v1
    s_setprio 0""")
    lds_wait("L_hs", 14, 24, 4, 11)
    A(f"""s_setprio 3
    ds_read_b64 v[40:41], v9 offset:{L_ST}
    s_waitcnt lgkmcnt(0)
    v_cndmask_b32 v40, v13, v40, vcc
    v_cndmask_b32 v41, 0, v41, vcc
    v_mov_b32 v44, v40""")
    row_allreduce("v_max_f32", [44])
    A(f"""v_sub_f32 v40, v40, v44
    v_mul_f32 v40, s55, v40
    v_exp_f32 v40, v40
    ds_write_b32 v10, v40 offset:{L_FAC}
    v_mul_f32 v45, v40, v41""")
    row_allreduce("v_add_f32", [45])
    A("""v_bfi_b32 v44, v11, s30, v44
    v_bfi_b32 v45, v11, s30, v45
    v_mov_b32 v46, s30
    v_mov_b32 v47, s30
    s_mov_b64 exec, 0x10001""")
    store2(44, 12, 53, 54, "L_nb2")
    A("s_mov_b64 exec, -1")
    stamp(3)
    srd(40, 12, 3670016)
    A(f"""s_setprio 0
    s_sub_u32 s50, s48, {a0}
    s_lshl4_add_u32 s84, s28, s50
    s_mul_i32 s84, s84, {32*896}
    s_mov_b32 m0, {L_WO}
    s_cmp_ge_u32 s50, 16
    s_waitcnt lgkmcnt(0)
    s_cbranch_scc1 L_hb""")
    lds_wait("L_hp", 14, 24, 8, hpf)
    for k in range(28):
        A(f"buffer_load_dwordx4 v8, s[40:43], s84 offen offset:{1024*(k&3)} {wof} lds")
        if k & 3 == 3 and k < 27: A("s_addk_i32 s84, 4096\ns_add_u32 m0, m0, 4096\ns_nop 0")
    stamp(5)
    A(f"""L_hb:
    s_barrier
    s_waitcnt vmcnt(0)
    ds_write_b32 v14, v15 offset:12
    s_waitcnt lgkmcnt(0)""")
    stamp(4)
    A(f"s_branch {B5}" if diag else "s_endpgm")

    WQ, GU, WD = 32, 64, 96
    XA = 16; XG = 112; D1 = 116
    A(f""".p2align 8
    L_w:
    v_and_b32 v0, 63, v0
    s_lshl3_add_u32 s48, s28, s29
    s_cmp_lg_u32 s3, 0
    s_cbranch_scc1 L_w_nx
    s_setprio 3
    v_lshlrev_b32 v8, 4, v0
    s_movk_i32 s34, 896
    s_waitcnt lgkmcnt(0)
    s_mov_b64 s[32:33], s[4:5]
    buffer_load_dwordx4 v[16:19], v8, s[32:35], 0 offen
    s_branch L_ln
    L_w_nx:
    s_cmp_gt_u32 s3, 8
    s_cbranch_scc1 L_g9
    s_and_b32 s3, s3, 7
    s_lshl_b32 s31, s3, 6
    v_and_b32 v9, 7, v0
    v_lshlrev_b32 v9, 4, v9                ; nb*16
    v_and_b32 v8, 8, v0
    v_and_b32 v10, 0x30, v0
    v_lshl_or_b32 v10, v8, 3, v10          ; 64kk+16g
    v_lshl_or_b32 v11, v10, 12, v9
    s_lshl_b32 s50, s31, 13
    s_lshl_b32 s51, s48, 7
    s_add_u32 s50, s50, s51
    s_mov_b32 s34, 3670016
    s_cmp_eq_u32 s3, 7
    s_waitcnt lgkmcnt(0)
    s_mov_b64 s[32:33], s[10:11]
    s_cbranch_scc1 L_w_pro""")
    def gu_load(n):
        tp, cb = n >> 1, n & 1
        A(f"buffer_load_dwordx4 v[{GU+4*n}:{GU+4*n+3}], v12, s[{88+4*cb}:{91+4*cb}], s{82+(tp>>1)} offen {'offset:3584 ' if tp & 1 else ''}nt")
    def wd_load(n): A(f"buffer_load_dwordx4 v[{WD+4*n}:{WD+4*n+3}], v13, s[40:43], s81 offen offset:{896*n} nt")
    stamp(1)
    for n in range(8):
        A(f"buffer_load_dwordx4 v[{WQ+4*n}:{WQ+4*n+3}], v11, s[32:35], s50 offen nt")
        if n < 7: A("s_addk_i32 s50, 8192")
    A("L_w_pro:\nv_and_b32 v1, 15, v0\nv_lshrrev_b32 v2, 4, v0")
    consts(); ws_setup()
    srd(40, 20, 1605632); srd(88, 16, 1605632); srd(92, 18, 1605632)
    A(f"""s_mul_i32 s49, s28, 7
    s_add_u32 s49, s49, s29
    s_cmp_gt_u32 s29, 3
    s_subb_u32 s49, s49, 0                 ; f = 7x + j - (j>3)
    s_cmp_lg_u32 s29, 3
    s_cselect_b32 s56, 1, 0                ; has_ffn
    v_lshrrev_b32 v8, 3, v8                ; kk
    v_mul_u32_u24 v12, {3584//4}, v10
    v_add_u32 v12, v12, v9
    v_mul_u32_u24 v13, {896//4}, v10
    v_add_u32 v13, v13, v9
    s_and_b32 s51, s49, 1                  ; half
    s_mul_i32 s51, s51, 7
    s_add_u32 s51, s51, s3
    s_mul_i32 s82, s51, {32*3584}
    s_lshr_b32 s52, s49, 1
    s_lshl_b32 s52, s52, 7
    s_add_u32 s82, s82, s52
    s_add_u32 s83, s82, {2*3584}
    s_lshl_b32 s51, s51, 7
    v_add_u32 v124, s51, v10
    s_lshl_b32 s51, s3, 8
    v_lshl_add_u32 v125, v10, 1, s51
    s_lshl_b32 s51, s3, 7
    s_mul_i32 s81, s49, {32*896}
    s_add_u32 s81, s81, s51
    v_and_b32 v15, 1, v2
    v_lshl_add_u32 v15, v15, 7, v9
    s_lshl_b32 s51, s3, 9
    v_lshl_add_u32 v126, v8, 8, v15
    v_add_u32 v126, s51, v126
    s_lshl_b32 s51, s3, 10
    v_lshl_add_u32 v15, v8, 9, v15
    v_add_u32 v15, s51, v15
    v_lshlrev_b32 v3, 1, v9
    v_lshl_add_u32 v127, v8, 4, v3""")
    masks()
    A(f"""s_waitcnt lgkmcnt(0)
    s_add_u32 s30, s30, 1
    s_barrier""")
    stamp(2)
    A(f"""s_cmp_eq_u32 s3, 7
    s_cbranch_scc1 L_w7
    ds_read_b128 v[16:19], v125 offset:{L_XN}
    ds_read_b128 v[20:23], v125 offset:{L_XN+16}
    ds_read_b128 v[{XG}:{XG+3}], v124 offset:{L_XN}
    v_mov_b32 v8, 1
    v_mov_b32 v9, {L_CNT}
    s_cmp_eq_u32 s56, 0
    s_cselect_b32 s90, 0, s90
    s_cselect_b32 s94, 0, s94
    s_cselect_b32 s82, 0, s82
    s_cselect_b32 s83, 0, s83
    s_waitcnt lgkmcnt(0)""")
    mk = lambda f, n: (lambda: f(n))
    loads = [None] * 8 + [mk(gu_load, n) for n in range(8)] + [mk(wd_load, n) for n in range(4)]
    st = [8]
    def issue_upto(inflight_after, consumed):
        while st[0] < len(loads) and st[0] - consumed < inflight_after:
            loads[st[0]](); st[0] += 1
    for n in range(8):
        a = 24 + 4 * (n & 1)
        for d in range(4): A(f"v_and_b32 v{a+d}, v{XA+n}, v{4+d}")
        A(f"s_waitcnt vmcnt({st[0] - n - 1})")
        mfma(D1, a, WQ + 4 * n, None if n == 0 else D1)
        issue_upto(wqd, n + 1)
    exec_set(VALID)
    A(f"ds_write_b128 v126, v[{D1}:{D1+3}] offset:{L_P1}")
    A(f"s_mov_b64 exec, 1\nds_add_u32 v9, v8\ns_mov_b64 exec, -1")
    stamp(3)
    A("s_cmp_eq_u32 s56, 0\ns_cbranch_scc1 L_w_n")
    issue_upto(3, 8)
    for n in range(8):
        tp, cb = n >> 1, n & 1
        a = 24 + 4 * (tp & 1)
        if cb == 0:
            for d in range(4): A(f"v_and_b32 v{a+d}, v{XG+tp}, v{4+d}")
        A(f"s_waitcnt vmcnt({st[0] - (8 + n) - 1})")
        mfma(D1 + 4 * cb, a, GU + 4 * n, None if tp == 0 else D1 + 4 * cb)
        issue_upto(wdepth, 8 + n + 1)
    exec_set(VALID)
    A(f"ds_write_b128 v15, v[{D1}:{D1+3}] offset:{L_P1B}\nds_write_b128 v15, v[{D1+4}:{D1+7}] offset:{L_P1B+256}")
    A(f"s_mov_b64 exec, 1\nds_add_u32 v9, v8 offset:4\ns_mov_b64 exec, -1")
    stamp(4)
    issue_upto(99, 0)
    lds_wait("L_wh", 9, 16, 8, 1)
    A(f"""ds_read_b128 v[16:19], v10 offset:{L_H}
    s_mul_i32 s52, s49, 1792
    s_lshl_b32 s51, s3, 8
    s_add_u32 s52, s52, s51
    s_add_u32 s52, s52, {OUTP+NOP*1792}
    v_mov_b32 v3, 0xfff
    v_and_b32 v20, 7, v0
    v_lshlrev_b32 v20, 5, v20
    v_and_b32 v21, 16, v0
    v_add_u32 v20, v20, v21
    s_waitcnt lgkmcnt(0)""")
    for n in range(4):
        a = 24 + 4 * (n & 1)
        for d in range(4): A(f"v_and_b32 v{a+d}, v{16+n}, v{4+d}")
        A(f"s_waitcnt vmcnt({3-n})")
        mfma(D1, a, WD + 4 * n, None if n == 0 else D1)
    for r in range(4): A(f"v_mov_b32 v{24+r}, v{D1+r}")
    for r in range(4): A(f"v_permlane32_swap_b32 v{D1+r}, v{24+r}")
    for r in range(4): A(f"v_add_f32_dpp v{D1+r}, v{24+r}, v{D1+r} row_ror:8 {DPPM}")
    for r in range(4): A(f"v_bfi_b32 v{D1+r}, v3, s30, v{D1+r}")
    A(f"s_mov_b64 exec, 0x00ff00ff\nbuffer_store_dwordx4 v[{D1}:{D1+3}], v20, s[44:47], s52 offen sc1")
    A(f"s_mov_b64 exec, 1\nds_add_u32 v9, v8 offset:16\ns_mov_b64 exec, -1")
    stamp(5)
    A(f"s_mov_b32 s62, 7\ns_branch L_f")
    A(f"""L_w_n:
    s_mul_i32 s52, s28, {24*2048}
    s_mul_i32 s51, s3, {7*1024}
    s_add_u32 s52, s52, s51
    s_add_u32 s52, s52, {OA}
    s_add_u32 s53, s52, 4096
    v_lshlrev_b32 v20, 4, v0""")
    lds_wait("L_wn", 9, 16, 20, 1)
    for k in range(7): A(f"buffer_load_dwordx4 v[24:27], v20, s[44:47], s{52+(k>>2)} offen offset:{1024*(k&3)} sc1")
    A("s_mov_b32 s62, 0")
    def treduce64(a):
        A(f"v_permlane32_swap_b32 v{a}, v{a+2}\nv_permlane32_swap_b32 v{a+1}, v{a+3}")
        A(f"v_add_f32 v{a}, v{a}, v{a+2}\nv_add_f32 v{a+1}, v{a+1}, v{a+3}")
        A(f"v_permlane16_swap_b32 v{a}, v{a+1}\nv_add_f32 v{a}, v{a}, v{a+1}")
        row_allreduce("v_add_f32", [a])
    A(f"""L_f:
    s_cmp_ge_u32 s3, {1 if fspread else 2}
    s_cbranch_scc1 {FIN}
    s_cmp_ge_u32 s28, 7
    s_cbranch_scc1 {FIN}""")
    lds_wait("L_fw", 9, 16, 16, "s62")
    A("s_lshl4_add_u32 s50, s28, s29\nL_f2:" if fspread else "s_lshl1_add_u32 s50, s48, s3")
    srd(32, 4, 896); srd(36, 22, 896)
    A(f"""    s_lshl_b32 s49, s50, 3
    v_lshlrev_b32 v8, 1, v2
    v_mul_u32_u24 v16, 1792, v0
    v_add_u32 v18, {64*1792}, v16
    v_min_u32 v17, 55, v0
    v_mul_u32_u24 v17, 1792, v17
    v_cmp_gt_u32 s[52:53], 56, v0
    s_lshl_b32 s51, s50, 4
    s_add_u32 s51, s51, {OUTP}
    s_add_u32 s55, s51, {NOP*1792}
    v_mov_b32 v3, 0xfff
    s_movk_i32 s54, 0x800
    s_mov_b32 s56, 0x{f2u(-math.log2(math.e)):x}
    buffer_load_ushort v10, v8, s[32:35], s49 offen
    buffer_load_ushort v11, v8, s[36:39], s49 offen""")
    poll("L_pf", [(20, 17, 0)], 55, 58, 28, False, sleep=fsleep)
    for r in range(4): A(f"v_bfi_b32 v{20+r}, v3, s54, v{20+r}")
    for r in range(4): A(f"v_cndmask_b32 v{32+r}, 0, v{20+r}, s[52:53]")
    treduce64(32)
    bf16r(32, 32)
    A("""v_mul_f32 v36, s56, v32
    v_exp_f32 v36, v36
    v_add_f32 v36, 1.0, v36
    v_rcp_f32 v36, v36
    v_mul_f32 v32, v32, v36""")
    bf16r(32, 32)
    A("v_lshlrev_b32 v12, 16, v10\nv_mov_b32 v9, s30\nv_mov_b32 v13, 0")
    stamp(6)
    poll("L_pa", [(20, 16, 0), (24, 18, 0)], 51, 58, 28, False)
    stamp(7)
    for r in range(8): A(f"v_bfi_b32 v{20+r}, v3, s54, v{20+r}")
    A("v_pk_add_f32 v[20:21], v[20:21], v[24:25]\nv_pk_add_f32 v[22:23], v[22:23], v[26:27]")
    treduce64(20)
    bf16r(20, 20)
    A("v_mul_f32 v20, v20, v32"); bf16r(20, 20)
    A("v_add_f32 v20, v20, v12\nv_cvt_pk_bf16_f32 v20, v20, v20")
    exec_set(0x0001000100010001)
    A(f"""buffer_store_short v20, v8, s[36:39], s49 offen
    s_cmp_lg_u32 s50, 0
    s_cbranch_scc1 L_nobump
    s_mov_b64 exec, 1
    buffer_store_dword v9, v13, s[44:47], 0 offen offset:{EPOCH}
    L_nobump:""")
    stamp(1)
    finish()
    A(f"""L_g9:
    s_cmp_gt_u32 s3, 9
    s_cbranch_scc1 L_end
    s_lshl_b32 s51, s48, 8
    s_add_u32 s51, s51, {QA}
    s_waitcnt lgkmcnt(0)
    s_load_dword s97, s[26:27], {EPOCH}
    s_add_u32 s80, s26, s51
    s_addc_u32 s81, s27, 0""")
    for k in range(4): A(f"s_load_dword s82, s[80:81], {64*k}")
    A(f"s_lshl_b32 s51, s48, 7\ns_add_u32 s51, s51, {STA}\ns_add_u32 s80, s26, s51\ns_addc_u32 s81, s27, 0\ns_load_dword s82, s[80:81], 0\ns_load_dword s82, s[80:81], 64")
    A(f"""s_mov_b32 s57, {limit}
    s_barrier
    s_cmp_eq_u32 s29, 3
    s_cbranch_scc1 L_end
    s_mul_i32 s52, s28, 7
    s_add_u32 s52, s52, s29
    s_cmp_gt_u32 s29, 3
    s_subb_u32 s52, s52, 0
    s_lshl_b32 s52, s52, 8
    s_add_u32 s52, s52, {XCH}
    s_add_u32 s98, s26, s52
    s_addc_u32 s99, s27, 0
    v_lshlrev_b32 v8, 4, v0
    v_mov_b32 v9, 1
    v_mov_b32 v10, {L_CNT}
    s_movk_i32 s52, 0xff
    s_mov_b64 exec, 0xffff
    s_mov_b32 s61, 0
    s_waitcnt lgkmcnt(0)
    s_add_u32 s97, s97, 1
    L_px:
    s_load_dwordx16 s[4:19], s[98:99], 0 glc
    s_load_dwordx16 s[20:35], s[98:99], 64 glc
    s_load_dwordx16 s[36:51], s[98:99], 128 glc
    s_load_dwordx16 s[80:95], s[98:99], 192 glc
    s_add_u32 s61, s61, 1
    s_cmp_gt_u32 s61, s57
    s_cselect_b32 s63, 0, s52
    s_waitcnt lgkmcnt(0)
    s_xor_b32 s60, s4, s97
    s_and_b32 s60, s60, s63
    s_cbranch_scc1 L_px""")
    for c, base in enumerate((4, 20, 36, 80)):
        for q in range(4):
            for r in range(4): A(f"v_writelane_b32 v{60+r}, s{base+4*q+r}, {4*c+q}")
    check([60], 44, 63, 97)
    A(f"""s_cbranch_vccnz L_px
    ds_write_b128 v8, v[60:63] offset:{L_XP}
    ds_write_b32 v10, v9 offset:12
    s_waitcnt lgkmcnt(0)
    s_endpgm""")
    A(f"""L_w7:
    s_setprio 2
    v_mov_b32 v8, 1
    v_mov_b32 v9, {L_CNT}
    v_lshlrev_b32 v17, 4, v1
    v_lshl_add_u32 v17, v2, 8, v17
    s_lshl_b32 s51, s48, 8
    s_add_u32 s51, s51, {QA}
    s_add_u32 s52, s51, {COPYB}
    s_and_b32 s53, s30, 0xffff
    v_cmp_gt_u32 vcc, 32, v0""")
    if diag: A("s_mov_b64 s[66:67], 0")
    lds_wait("L_wq", 9, 16, 0, 7)
    for k in range(4): A(f"ds_read_b128 v[{32+4*k}:{35+4*k}], v17 offset:{L_P1+1024*k}")
    A("s_waitcnt lgkmcnt(0)")
    for r in range(4): A(f"v_cndmask_b32 v{44+r}, 0, v{44+r}, vcc")
    for k in range(1, 4):
        A(f"v_pk_add_f32 v[32:33], v[32:33], v[{32+4*k}:{33+4*k}]\nv_pk_add_f32 v[34:35], v[34:35], v[{34+4*k}:{35+4*k}]")
    cross_allreduce("v_add_f32", [32, 33, 34, 35], [36, 37, 38, 39])
    for r in range(4): bf16r(32 + r, 32 + r)
    for r in range(4): A(f"v_or_b32 v{32+r}, s53, v{32+r}")
    A("s_mov_b64 exec, 0xffff")
    store2(32, 127, 51, 52)
    A("ds_write_b32 v9, v8 offset:20\ns_mov_b64 exec, -1")
    stamp(3)
    A(f"""s_cmp_eq_u32 s56, 0
    s_cbranch_scc1 L_w7_end
    s_and_b32 s54, s49, 1
    s_lshl_b32 s54, s54, 6
    v_and_b32 v17, 31, v0
    v_lshlrev_b32 v17, 4, v17
    v_xor_b32 v17, s54, v17
    v_lshrrev_b32 v18, 5, v0
    v_mul_u32_u24 v18, {7*512}, v18
    v_add_u32 v17, v17, v18
    v_and_b32 v18, 0x18, v0
    v_lshlrev_b32 v18, 3, v18
    v_and_b32 v19, 3, v0
    v_lshl_add_u32 v18, v19, 4, v18
    v_lshlrev_b32 v19, 5, v19
    v_and_b32 v20, 8, v0
    v_lshl_add_u32 v19, v20, 1, v19
    s_xor_b32 s51, s49, 1
    s_lshl_b32 s51, s51, 8
    s_add_u32 s51, s51, {XCH}
    v_mov_b32 v3, 0xff""")
    lds_wait("L_wg", 9, 16, 4, 7)
    for k in range(7): A(f"ds_read_b128 v[{32+4*k}:{35+4*k}], v17 offset:{L_P1B+512*k}")
    A("s_waitcnt lgkmcnt(0)")
    for k in range(1, 7):
        A(f"v_pk_add_f32 v[32:33], v[32:33], v[{32+4*k}:{33+4*k}]\nv_pk_add_f32 v[34:35], v[34:35], v[{34+4*k}:{35+4*k}]")
    cross_allreduce("v_add_f32", [32, 33, 34, 35], [36, 37, 38, 39], which=(32,))
    for r in range(4): A(f"v_bfi_b32 v{36+r}, v3, s30, v{32+r}")
    exec_set(0xf0f0f0f0)
    A("buffer_store_dwordx4 v[36:39], v18, s[44:47], s51 offen sc1\ns_mov_b64 exec, -1")
    stamp(4)
    lds_wait("L_wx", 9, 16, 12, 1)
    A(f"ds_read_b128 v[60:63], v18 offset:{L_XP}\ns_movk_i32 s55, 0x80\ns_waitcnt lgkmcnt(0)")
    stamp(1)
    for r in range(4): A(f"v_bfi_b32 v{60+r}, v3, s55, v{60+r}")
    for r in range(4): A(f"v_add_f32 v{32+r}, v{32+r}, v{60+r}")
    for r in range(4): bf16r(32 + r, 32 + r)
    for r in range(4): A(f"v_mov_b32 v{40+r}, v{32+r}")
    for r in range(4): A(f"v_permlane16_swap_b32 v{32+r}, v{40+r}")
    c1 = -2.0 * math.sqrt(2.0 / math.pi) * math.log2(math.e)
    A(f"s_mov_b32 s51, 0x{f2u(c1*0.044715):x}\nv_mov_b32 v48, 0x{f2u(c1):x}")
    for r in range(4): A(f"v_mul_f32 v{44+r}, v{32+r}, v{32+r}")
    for r in range(4): A(f"v_fma_f32 v{44+r}, v{44+r}, s51, v48")
    for r in range(4): A(f"v_mul_f32 v{44+r}, v{44+r}, v{32+r}")
    for r in range(4): A(f"v_exp_f32 v{44+r}, v{44+r}")
    for r in range(4): A(f"v_add_f32 v{44+r}, 1.0, v{44+r}")
    for r in range(4): A(f"v_rcp_f32 v{44+r}, v{44+r}")
    for r in range(4): A(f"v_mul_f32 v{44+r}, v{44+r}, v{32+r}")
    for r in range(4): bf16r(44 + r, 44 + r)
    for r in range(4): A(f"v_mul_f32 v{44+r}, v{44+r}, v{40+r}")
    for r in range(4): A(f"v_cvt_pk_bf16_f32 v{44+r}, v{44+r}, v{44+r}")
    A(f"""s_mov_b64 exec, 0x0f0f
    ds_write_b128 v19, v[44:47] offset:{L_H}
    ds_write_b32 v9, v8 offset:8
    s_mov_b64 exec, -1
    L_w7_end:
    s_waitcnt lgkmcnt(0)""")
    finish()
    A("L_ln:")
    A(f"s_mov_b32 s52, 0xffff0000\ns_mov_b32 s53, 0x{f2u(1.0/448):x}\nv_cmp_gt_u32 vcc, 56, v0")
    A(f"v_lshlrev_b32 v8, 5, v0\nv_lshlrev_b32 v9, 2, v0\nv_mov_b32 v10, 0\nds_write_b32 v9, v10 offset:{L_CNT}\ns_waitcnt vmcnt(0)")
    for k in range(4): A(f"v_lshlrev_b32 v{20+2*k}, 16, v{16+k}\nv_and_b32 v{21+2*k}, s52, v{16+k}")
    A("v_add_f32 v28, v20, v21")
    for k in range(2, 8): A(f"v_add_f32 v28, v28, v{20+k}")
    row_allreduce("v_add_f32", [28]); cross_allreduce("v_add_f32", [28], [29])
    A("v_mul_f32 v28, s53, v28")
    for k in range(8): A(f"v_sub_f32 v{32+k}, v{20+k}, v28")
    A("v_mul_f32 v30, v32, v32")
    for k in range(1, 8): A(f"v_fmac_f32 v30, v{32+k}, v{32+k}")
    A("v_cndmask_b32 v30, 0, v30, vcc")
    row_allreduce("v_add_f32", [30]); cross_allreduce("v_add_f32", [30], [29])
    A("v_mul_f32 v30, s53, v30"); bf16r(30, 30)
    A(f"v_add_f32 v30, 0x{f2u(1e-5):x}, v30"); bf16r(30, 30)
    A("v_sqrt_f32 v30, v30"); bf16r(30, 30)
    A("v_rcp_f32 v31, v30"); bf16r(28, 28)
    for k in range(8): A(f"v_sub_f32 v{20+k}, v{20+k}, v28")
    for k in range(8): bf16r(20 + k, 20 + k)
    for k in range(8): A(f"v_mul_f32 v{32+k}, v{20+k}, v31")
    for k in range(8): A(f"v_fma_f32 v{20+k}, -v{32+k}, v30, v{20+k}")
    for k in range(8): A(f"v_fmac_f32 v{32+k}, v{20+k}, v31")
    for k in range(8): A(f"v_cvt_pk_bf16_f32 v{32+k}, v{32+k}, v{32+k}")
    A(f"""s_mov_b64 exec, vcc
    ds_write_b128 v8, v[32:35] offset:{L_XN}
    ds_write_b128 v8, v[36:39] offset:{L_XN+16}
    s_waitcnt lgkmcnt(0)
    s_endpgm""")
    if diag: A("L_fin:\ns_mov_b64 exec, -1")
    if probe:
        lo, hi, wv, k = probe
        A(f"""s_waitcnt lgkmcnt(0)
        s_cmp_lt_u32 s2, {lo}
        s_cbranch_scc1 L_end
        s_cmp_ge_u32 s2, {hi}
        s_cbranch_scc1 L_end
        s_cmp_lg_u32 s3, {wv}
        s_cbranch_scc1 L_end
        L_probe:
        s_memrealtime s[50:51]
        s_waitcnt lgkmcnt(0)
        s_sub_u32 s50, s50, s{64+2*k}
        s_cmp_lt_u32 s50, 3000
        s_cbranch_scc1 L_probe""")
    elif diag:
        A(f"""s_waitcnt lgkmcnt(0)
        s_sleep 127
        s_sleep 60
        s_mul_i32 s50, s2, {NW}
        s_add_u32 s50, s50, s3
        s_lshl_b32 s50, s50, 6
        s_add_u32 s50, s50, {STAMP_OFF}
        v_mov_b32 v8, 0
        s_mov_b64 exec, 1""")
        for k in range(0, 8, 2):
            A(f"v_mov_b32 v12, s{64+2*k}\nv_mov_b32 v13, s{65+2*k}\nv_mov_b32 v14, s{66+2*k}\nv_mov_b32 v15, s{67+2*k}")
            A(f"buffer_store_dwordx4 v[12:15], v8, s[44:47], s50 offen offset:{8*k}\ns_nop 1")
    A(f"""L_end:
    s_endpgm
.section .rodata,"a"
.p2align 6
.amdhsa_kernel {KN}_kernel
  .amdhsa_next_free_vgpr 136
  .amdhsa_next_free_sgpr 100
  .amdhsa_accum_offset 136
  .amdhsa_group_segment_fixed_size 0
  .amdhsa_kernarg_size 96
  .amdhsa_user_sgpr_count 2
  .amdhsa_user_sgpr_kernarg_segment_ptr 1
  .amdhsa_system_sgpr_workgroup_id_x 1
.end_amdhsa_kernel""")
    open(fname, "w").write(A.text())
    return fname
if __name__ == "__main__":
    gen("v8.s"); gen("v8d.s", diag=True)
```

```python
from gen8 import gen
X = None
D3 = (X, X, 1, 1, 1, 1, 1, 1, 1, 1, 2, 2, 2, 3, 3, X)
V2 = (X, X, 1, 1, 1, 1, 1, 1, 1, 2, 2, 2, 2, 2, 2, 2)
V2b = (X, X, 1, 1, 1, 1, 1, 2, 2, 2, 2, 2, 2, 2, 2, 2)
V3 = (X, X, 1, 1, 1, 1, 1, 1, 1, 1, 1, 2, 2, 2, 2, 2)
cfgs = {
 "a": dict(),
 "b": dict(wdepth=4, wqd=2),
 "c": dict(wdepth=3, wqd=2),
 "d": dict(wdepth=3, wqd=1),
 "e": dict(wdepth=3, wqd=2, sched=V2, qk_from=10),
 "f": dict(wdepth=3, wqd=2, sched=V3),
 "g": dict(wdepth=4, wqd=2, sched=V2b, qk_from=10),
 "h": dict(wdepth=3, wqd=2, sched2=(X, X, 1, 1, 1, 1, 1, 1, 1, 1, 3, 3, 3, X, X, X)),
}
for k, c in cfgs.items():
    gen(f"r9_{k}.s", **c)
for k in "c": gen(f"r9_{k}d.s", diag=True, **cfgs[k])
print(" ".join(cfgs))
```
